```python
import torch

def _softmax(x, axis=-1):
    return torch.softmax(x, dim=axis)

def _gelu(x):
    return torch.nn.functional.gelu(x, approximate='tanh')

def _silu(x):
    return torch.nn.functional.silu(x)

def _sigmoid(x):
    return torch.sigmoid(x)

def _layernorm(x, axis=-1, eps=1e-05):
    m = x.mean(dim=axis, keepdim=True)
    v = x.var(dim=axis, keepdim=True, unbiased=False)
    return (x - m) / torch.sqrt(v + eps)

def _scatter_add(tgt, idx, src, axis=0):
    return tgt.clone().index_add_(axis, idx, src)

def _segment_sum(src, seg, n):
    out = torch.zeros((n,) + src.shape[1:], dtype=src.dtype)
    return out.index_add_(0, seg, src)

def _pad(x, pw):
    flat = tuple((v for pair in reversed(pw) for v in pair))
    return torch.nn.functional.pad(x, flat)
kernel_name = 'adaLN_cond__ssm_conv_s4__glu_gated_swiglu__prompt'

def setup_inputs():

    _w = lambda a: (lambda t: t.to(torch.bfloat16) if t.is_floating_point() else t)(torch.as_tensor(a))

    def _A_setup():
        B, L, D, N = (1, 2048, 512, 128)
        A_re = -(lambda _x: torch.exp(torch.as_tensor(_x)))((lambda *s: torch.randn(*s, dtype=torch.bfloat16) * 3.2)(D, N))
        A_im = torch.pi * (lambda *s: torch.randn(*s, dtype=torch.bfloat16) * 0.05)(D, N)
        B_re = (lambda *s: torch.randn(*s, dtype=torch.bfloat16) * 0.1)(D, N)
        B_im = (lambda *s: torch.randn(*s, dtype=torch.bfloat16) * 0.1)(D, N)
        C_re = (lambda *s: torch.randn(*s, dtype=torch.bfloat16) * 0.1)(D, N)
        C_im = (lambda *s: torch.randn(*s, dtype=torch.bfloat16) * 0.1)(D, N)
        log_dt = (lambda *s: torch.randn(*s, dtype=torch.bfloat16) * 0.05)(D) * 0.5 - 4.0
        Dskip = (lambda *s: torch.randn(*s, dtype=torch.bfloat16) * 0.05)(D)
        return {'u': _w((lambda *s: torch.randn(*s, dtype=torch.bfloat16) * 0.05)(B, L, D)), 'A_re': _w(A_re), 'A_im': _w(A_im), 'B_re': _w(B_re), 'B_im': _w(B_im), 'C_re': _w(C_re), 'C_im': _w(C_im), 'log_dt': _w(log_dt), 'Dskip': _w(Dskip)}
    _A_in = _A_setup()

    def _B_setup():
        B, S, D, F = (1, 2048, 512, 1792)
        return {'x': _w((lambda *s: torch.randn(*s, dtype=torch.bfloat16) * 0.05)(B, S, D)), 'w1': _w((lambda *s: torch.randn(*s, dtype=torch.bfloat16) * 0.4)(D, F) * (2.0 / D) ** 0.5), 'w3': _w((lambda *s: torch.randn(*s, dtype=torch.bfloat16) * 0.4)(D, F) * (2.0 / D) ** 0.5), 'w2': _w((lambda *s: torch.randn(*s, dtype=torch.bfloat16) * 0.4)(F, D) * (2.0 / F) ** 0.5)}
    _B_in = _B_setup()
    return {'A_u': _A_in['u'], 'A_A_re': _A_in['A_re'], 'A_A_im': _A_in['A_im'], 'A_B_re': _A_in['B_re'], 'A_B_im': _A_in['B_im'], 'A_C_re': _A_in['C_re'], 'A_C_im': _A_in['C_im'], 'A_log_dt': _A_in['log_dt'], 'A_Dskip': _A_in['Dskip'], 'B_x': _B_in['x'], 'B_w1': _B_in['w1'], 'B_w3': _B_in['w3'], 'B_w2': _B_in['w2'], 'c': _w((lambda *s: torch.randn(*s, dtype=torch.bfloat16) * 0.2)(1, 512) * 8.0), 'w_mod': _w((lambda *s: torch.randn(*s, dtype=torch.bfloat16) * 0.2)(512, 6 * 512) * 512 ** (-0.5) * 8.0)}

def reference(A_u, A_A_re, A_A_im, A_B_re, A_B_im, A_C_re, A_C_im, A_log_dt, A_Dskip, B_x, B_w1, B_w3, B_w2, c, w_mod):

    def _A_ref(u, A_re, A_im, B_re, B_im, C_re, C_im, log_dt, Dskip):
        Bsz, L, D = u.shape
        dt = torch.exp(log_dt)[:, None]
        A = A_re + 1j * A_im
        Bc = B_re + 1j * B_im
        Cc = C_re + 1j * C_im
        logdA = dt * A
        dB = dt * Bc
        l = (lambda x, dt: x.to(dt))(torch.arange(L), A_re.dtype)
        P = torch.exp(logdA[:, :, None] * l[None, None, :])
        K = torch.einsum('dn,dnl,dn->dl', Cc, P, dB).real
        L2 = 2 * L
        Kp = _pad(K, ((0, 0), (0, L)))
        up = (lambda x, *d: x.permute(*d))(u, 0, 2, 1)
        up = _pad(up, ((0, 0), (0, 0), (0, L)))
        Kf = (lambda x, axes=(-2, -1): torch.fft.rfft2(x.float(), dim=axes))(Kp[:, None, :], axes=(-2, -1))
        Uf = (lambda x, axes=(-2, -1): torch.fft.rfft2(x.float(), dim=axes))(up[:, :, None, :], axes=(-2, -1))
        Yf = Uf * Kf[None, :, :, :]
        y = (lambda x, s, axes=(-2, -1): torch.fft.irfft2(x, s=s, dim=axes).to(torch.bfloat16))(Yf, (1, L2), axes=(-2, -1))[:, :, 0, :L]
        y = (lambda x, *d: x.permute(*d))(y, 0, 2, 1) + u * Dskip[None, None, :]
        return y

    def _B_ref(x, w1, w3, w2):
        gate = torch.einsum('bsd,df->bsf', x, w1)
        up = torch.einsum('bsd,df->bsf', x, w3)
        h = _silu(gate) * up
        out = torch.einsum('bsf,fd->bsd', h, w2)
        return out
    x = A_u
    mod = (_silu(c) @ w_mod).reshape(c.shape[0], 6, 1, -1)
    sa, ca, ga, sb, cb, gb = (mod[:, 0].clone(), mod[:, 1].clone(), mod[:, 2].clone(), mod[:, 3].clone(), mod[:, 4].clone(), mod[:, 5].clone())
    h = _layernorm(x, axis=-1) * (1 + ca) + sa
    x = x + ga * _A_ref(h, A_A_re, A_A_im, A_B_re, A_B_im, A_C_re, A_C_im, A_log_dt, A_Dskip)
    h = _layernorm(x, axis=-1) * (1 + cb) + sb
    x = x + gb * _B_ref(h, B_w1, B_w3, B_w2)
    return x
```

```python
import re
REG = re.compile(r'\b([vas])\[(\d+):(\d+)\]|\b([vas])(\d+)\b|\b(vcc|exec|m0)\b')
def regs(op):
    out = set()
    for m in REG.finditer(op):
        if m.group(1): out |= {(m.group(1), i) for i in range(int(m.group(2)), int(m.group(3)) + 1)}
        elif m.group(4): out.add((m.group(4), int(m.group(5))))
        else: out.add((m.group(6), 0))
    return out
TRANS = ('v_exp_', 'v_log_', 'v_rcp_', 'v_rsq_', 'v_sqrt_', 'v_sin_', 'v_cos_')
class Ins:
    def __init__(s, text):
        s.text = text
        t = text.split(';')[0].strip()
        s.mn = t.split()[0] if t else ''
        rest = t[len(s.mn):].strip()
        ops = [o.strip() for o in re.split(r',(?![^\[]*\])', rest)] if rest else []
        s.ops = ops
        mn = s.mn
        s.valu = mn.startswith('v_') and not mn.startswith('v_mfma')
        s.mfma = mn.startswith('v_mfma')
        s.vmem = mn.startswith(('buffer_', 'global_'))
        s.ds = mn.startswith('ds_')
        s.salu = mn.startswith('s_')
        s.trans = mn.startswith(TRANS)
        s.dpp = '_dpp' in mn
        s.perml = mn.startswith('v_permlane')
        s.rdl = mn.startswith(('v_readlane', 'v_readfirstlane'))
        s.W = set(); s.R = set()
        allr = [regs(o) for o in ops]
        if s.valu or s.mfma:
            nd = 2 if ('_co_' in mn or s.perml) else 1
            for i, r in enumerate(allr):
                if i < nd: s.W |= r
                if i >= nd or s.perml or (i == 0 and (mn.startswith(('v_fmac', 'v_dot2c')) or s.dpp)): s.R |= r
            if mn.startswith('v_cmpx'): s.W.add(('exec', 0))
        elif s.vmem or s.ds:
            isload = ('load' in mn or 'read' in mn or 'permute' in mn or 'swizzle' in mn) and ' lds' not in t and '_lds_' not in mn
            for i, r in enumerate(allr):
                if i == 0 and isload: s.W |= r
                else: s.R |= r
            s.ldsdma = (' lds' in t or '_lds_' in mn)
        elif s.salu:
            for i, r in enumerate(allr):
                if i == 0 and not mn.startswith(('s_cmp', 's_cbranch', 's_branch', 's_waitcnt', 's_nop', 's_barrier', 's_setprio', 's_sleep', 's_endpgm')): s.W |= r
                else: s.R |= r
        if s.mfma:
            s.passes = 8 if '32x32' in mn else 4
            s.A = allr[1] | allr[2]; s.C = allr[3]; s.D = allr[0]
        s.states = 1
        if mn == 's_nop': s.states = int(ops[0], 0) + 1
        s.widestore = (s.vmem and 'store' in mn and ('x4' in mn or 'x3' in mn))
def need(p, c):
    n = 0
    if p.valu:
        vw = {r for r in p.W if r[0] in 'va'}; sw = {r for r in p.W if r[0] in ('s', 'vcc')}
        if vw & c.R:
            if c.dpp or c.perml: n = max(n, 2)
            if c.rdl: n = max(n, 1)
            if c.mfma: n = max(n, 2)
            if p.trans and (c.valu or c.mfma): n = max(n, 1)
            if 'sdwa' in p.mn and c.valu: n = max(n, 1)
        if sw & c.R:
            if c.valu: n = max(n, 4 if c.rdl else 2)
            if c.vmem: n = max(n, 5)
        if ('exec', 0) in p.W:
            if c.dpp: n = max(n, 5)
            if c.rdl or c.perml or c.mfma: n = max(n, 4)
    if p.mfma:
        big = {4: 8, 8: 12}[p.passes]
        if c.mfma:
            if p.D & c.A: n = max(n, big)
            if p.D & c.C and not (p.D == c.C and p.passes == c.passes): n = max(n, big - 2)
            if p.D & c.D and not (p.D == c.C): n = max(n, big)
        else:
            if p.D & (c.R | c.W): n = max(n, big)
            if c.valu and (p.C & c.W): n = max(n, {4: 3, 8: 7}[p.passes])
    if p.widestore and (c.valu or c.vmem or c.ds or c.mfma):
        data = regs(p.ops[0]) if p.mn.startswith('buffer') else regs(p.ops[1])
        if data & c.W: n = max(n, 2)
    if p.salu and ('m0', 0) in p.W and (c.vmem and getattr(c, 'ldsdma', False)): n = max(n, 1)
    return n
def fix(lines):
    out = []; hist = []
    for ln in lines:
        t = ln.split(';')[0].strip()
        if not t or t.startswith('.') :
            out.append(ln); continue
        if t.endswith(':'):
            out.append(ln); continue
        c = Ins(ln)
        dist = 0; pad = 0
        for p in reversed(hist[-24:]):
            nreq = need(p, c)
            if nreq > dist: pad = max(pad, nreq - dist)
            dist += p.states
            if dist > 20: break
        if pad:
            nop = Ins('s_nop %d' % (pad - 1)); out.append('  s_nop %d' % (pad - 1)); hist.append(nop)
        out.append(ln); hist.append(c)
    return out
class K:
    def __init__(s): s.L = []
    def __call__(s, fmt, *a):
        for ln in (fmt % a if a else fmt).split('\n'):
            ln = ln.strip()
            if ln: s.L.append(ln if ln.endswith(':') else '  ' + ln)
def vr(a, n=1): return 'v%d' % a if n == 1 else 'v[%d:%d]' % (a, a + n - 1)
def ar(a, n=1): return 'a%d' % a if n == 1 else 'a[%d:%d]' % (a, a + n - 1)
def sr(a, n=1): return 's%d' % a if n == 1 else 's[%d:%d]' % (a, a + n - 1)
```

```python
from asmlib import *
XT, X1T, X1R, WP, W2F, HH = 0x0, 0x200000, 0x400000, 0x600000, 0xA00000, 0xC00000
STATS, MOD, ST = 0x1300000, 0x1310000, 0x1320000
ARG = dict(u=0, Are=8, Aim=16, Bre=24, Bim=32, Cre=40, Cim=48, ldt=56, Dsk=64, w1=80, w3=88, w2=96, c=104, wmod=112, out=120, dbg=128, ws=136)
def ldptr(k, dst, name): k('s_load_dwordx2 %s, s[0:1], %d', sr(dst, 2), ARG[name])
def mksrd(k, dst, size, add=0, src=None):
    if src is not None:
        if add:
            k('s_add_u32 s%d, s%d, 0x%x\ns_addc_u32 s%d, s%d, 0', dst, src, add, dst + 1, src + 1)
        else:
            k('s_mov_b32 s%d, s%d\ns_mov_b32 s%d, s%d', dst, src, dst + 1, src + 1)
    elif add:
        k('s_add_u32 s%d, s%d, 0x%x\ns_addc_u32 s%d, s%d, 0', dst, dst, add, dst + 1, dst + 1)
    k('s_mov_b32 s%d, 0x%x\ns_mov_b32 s%d, 0x00020000', dst + 2, size, dst + 3)
def transpose8(k, src, dst, slo, shi):
    for j in range(8):
        for a in range(4):
            k('v_perm_b32 v%d, v%d, v%d, s%d', dst + 4 * j + a, src + 4 * (2 * a + 1) + (j >> 1), src + 4 * (2 * a) + (j >> 1), shi if j & 1 else slo)
def rowsum16(k, rs):
    for mode in ('quad_perm:[1,0,3,2]', 'quad_perm:[2,3,0,1]', 'row_half_mirror', 'row_mirror'):
        for r in rs: k('v_add_f32_dpp v%d, v%d, v%d %s row_mask:0xf bank_mask:0xf', r, r, r, mode)
def bfround(k, d, s):
    k('v_cvt_pk_bf16_f32 v%d, v%d, v%d\nv_lshlrev_b32 v%d, 16, v%d', d, s, s, d, d)
def lnstats(k, s1, s2, m, r, t):
    k('v_mul_f32 v%d, 0x3b000000, v%d', m, s1)
    k('v_mul_f32 v%d, 0x3b000000, v%d', t, s2)
    k('v_fma_f32 v%d, -v%d, v%d, v%d', t, m, m, t)
    k('v_max_f32 v%d, 0, v%d', t, t)
    bfround(k, t, t); k('v_add_f32 v%d, 0x3727c5ac, v%d', t, t); bfround(k, t, t)
    k('v_sqrt_f32 v%d, v%d', t, t); bfround(k, t, t)
    k('v_rcp_f32 v%d, v%d', r, t); bfround(k, m, m)
def k1():
    k = K()
    k('s_cmp_ge_u32 s2, 168\ns_cbranch_scc1 K1_END')
    ldptr(k, 4, 'ws')
    k('s_mov_b32 s20, 0x05040100\ns_mov_b32 s21, 0x07060302\ns_mov_b32 s22, 0x3f803f80')
    k('v_and_b32 v1, 63, v0\nv_lshrrev_b32 v2, 6, v0')
    k('s_cmp_ge_u32 s2, 112\ns_cbranch_scc1 K1_W2\ns_cmp_ge_u32 s2, 64\ns_cbranch_scc1 K1_MOD')
    ldptr(k, 8, 'u'); k('s_waitcnt lgkmcnt(0)')
    mksrd(k, 8, 0x200000); mksrd(k, 12, 0x200000, XT, 4); mksrd(k, 16, 0x4000, STATS, 4)
    k('s_lshl_b32 s3, s2, 5')
    k('v_lshl_add_u32 v3, v2, 3, s3')
    k('v_lshlrev_b32 v4, 10, v3\nv_lshl_add_u32 v4, v1, 4, v4')
    k('v_add_u32 v5, 0x1000, v4')
    for i in range(8): k('buffer_load_dwordx4 %s, v%d, s[8:11], 0 offen offset:%d', vr(16 + 4 * i, 4), 4 if i < 4 else 5, (i & 3) * 1024)
    k('v_lshlrev_b32 v6, 15, v1\nv_lshl_add_u32 v6, v3, 1, v6')
    for i in range(16): k('v_mov_b32 v%d, 0', 80 + i)
    for i in range(8):
        k('s_waitcnt vmcnt(%d)', 7 - i)
        for a in range(4):
            k('v_dot2_f32_bf16 v%d, v%d, s22, v%d', 80 + i, 16 + 4 * i + a, 80 + i)
            k('v_dot2_f32_bf16 v%d, v%d, v%d, v%d', 88 + i, 16 + 4 * i + a, 16 + 4 * i + a, 88 + i)
    transpose8(k, 16, 48, 20, 21)
    for j in range(8):
        k('s_mov_b32 s23, %d', j * 4096)
        k('buffer_store_dwordx4 %s, v6, s[12:15], s23 offen', vr(48 + 4 * j, 4))
    for b in (80, 88):
        for i in range(4): k('v_permlane32_swap_b32 v%d, v%d', b + i, b + i + 4)
        for i in range(4): k('v_add_f32 v%d, v%d, v%d', b + i, b + i, b + i + 4)
        for i in range(2): k('v_permlane16_swap_b32 v%d, v%d', b + i, b + i + 2)
        for i in range(2): k('v_add_f32 v%d, v%d, v%d', b + i, b + i, b + i + 2)
    rowsum16(k, [80, 81, 88, 89])
    lnstats(k, 80, 88, 96, 97, 100); lnstats(k, 81, 89, 98, 99, 101)
    k('v_lshrrev_b32 v7, 4, v1\nv_lshl_add_u32 v7, v7, 1, v3\nv_lshlrev_b32 v7, 3, v7')
    k('v_and_b32 v8, 15, v1\nv_cmp_eq_u32 vcc, 0, v8\ns_and_saveexec_b64 s[24:25], vcc')
    k('buffer_store_dwordx4 v[96:99], v7, s[16:19], 0 offen')
    k('s_endpgm')
    k('K1_MOD:')
    ldptr(k, 8, 'wmod'); ldptr(k, 12, 'c'); k('s_waitcnt lgkmcnt(0)')
    mksrd(k, 8, 512 * 6144); mksrd(k, 12, 1024); mksrd(k, 16, 3072 * 4, MOD, 4)
    k('s_sub_u32 s3, s2, 64\ns_lshl_b32 s23, s3, 7')
    k('v_lshrrev_b32 v3, 3, v0\nv_and_b32 v4, 7, v0')
    k('v_lshlrev_b32 v5, 5, v3')
    k('buffer_load_dwordx4 v[8:11], v5, s[12:15], 0 offen\nbuffer_load_dwordx4 v[12:15], v5, s[12:15], 0 offen offset:16')
    k('s_mov_b32 s24, %d\nv_mul_lo_u32 v5, v3, s24\nv_lshl_add_u32 v5, v4, 4, v5', 16 * 6144)
    for i in range(16):
        k('s_add_u32 s24, s23, %d', i * 6144)
        k('buffer_load_dwordx4 %s, v5, s[8:11], s24 offen', vr(32 + 4 * i, 4))
    k('s_waitcnt vmcnt(16)')
    for i in range(16):
        k('v_lshlrev_b32 v%d, 16, v%d' % (16 + i, 8 + (i >> 1)) if i % 2 == 0 else 'v_and_b32 v%d, 0xffff0000, v%d' % (16 + i, 8 + (i >> 1)))
    for i in range(16):
        k('v_mul_f32 v100, 0xbfb8aa3b, v%d\nv_exp_f32 v100, v100\nv_add_f32 v100, 1.0, v100\nv_rcp_f32 v100, v100\nv_mul_f32 v%d, v%d, v100', 16 + i, 16 + i, 16 + i)
        bfround(k, 16 + i, 16 + i)
    for j in range(8): k('v_mov_b32 v%d, 0', 104 + j)
    for i in range(16):
        k('s_waitcnt vmcnt(%d)', 15 - i)
        for a in range(4):
            k('v_lshlrev_b32 v100, 16, v%d\nv_and_b32 v101, 0xffff0000, v%d', 32 + 4 * i + a, 32 + 4 * i + a)
            k('v_fmac_f32 v%d, v100, v%d\nv_fmac_f32 v%d, v101, v%d', 104 + 2 * a, 16 + i, 105 + 2 * a, 16 + i)
    for i in range(4): k('v_permlane32_swap_b32 v%d, v%d', 104 + i, 108 + i)
    for i in range(4): k('v_add_f32 v%d, v%d, v%d', 104 + i, 104 + i, 108 + i)
    for i in range(2): k('v_permlane16_swap_b32 v%d, v%d', 104 + i, 106 + i)
    for i in range(2): k('v_add_f32 v%d, v%d, v%d', 104 + i, 104 + i, 106 + i)
    for i in range(2): k('v_add_f32_dpp v%d, v%d, v%d row_ror:8 row_mask:0xf bank_mask:0xf', 104 + i, 104 + i, 104 + i)
    k('v_lshrrev_b32 v6, 4, v1\nv_lshlrev_b32 v6, 3, v6\nv_lshl_add_u32 v6, v4, 5, v6\nv_lshl_add_u32 v6, v2, 8, v6')
    k('ds_write_b64 v6, v[104:105]\ns_waitcnt lgkmcnt(0)\ns_barrier')
    k('v_lshlrev_b32 v6, 2, v1')
    for w in range(4): k('ds_read_b32 v%d, v6 offset:%d', 110 + w, 256 * w)
    k('s_waitcnt lgkmcnt(0)\nv_add_f32 v110, v110, v111\nv_add_f32 v112, v112, v113\nv_add_f32 v110, v110, v112')
    bfround(k, 110, 110)
    k('s_lshl_b32 s23, s3, 8')
    k('v_cmp_gt_u32 vcc, 64, v0\ns_and_saveexec_b64 s[24:25], vcc\ns_cbranch_execz K1_END')
    k('buffer_store_dword v110, v6, s[16:19], s23 offen')
    k('s_endpgm')
    k('K1_W2:')
    ldptr(k, 8, 'w2'); k('s_waitcnt lgkmcnt(0)')
    mksrd(k, 8, 1792 * 1024); mksrd(k, 12, 0x1C0000, W2F, 4)
    k('s_sub_u32 s3, s2, 112\ns_lshl_b32 s23, s3, 15')
    k('v_lshlrev_b32 v4, 12, v2\nv_lshl_add_u32 v4, v1, 4, v4\nv_add_u32 v5, 0x4000, v4')
    for i in range(8): k('buffer_load_dwordx4 %s, v%d, s[8:11], s23 offen offset:%d', vr(16 + 4 * i, 4), 4 if i < 4 else 5, (i & 3) * 1024)
    k('v_lshrrev_b32 v6, 3, v1\ns_mov_b32 s24, %d\nv_mul_lo_u32 v6, v6, s24', 56 * 4096)
    k('v_and_b32 v7, 1, v1\nv_lshl_add_u32 v6, v7, 11, v6\nv_bfe_u32 v7, v1, 1, 2\nv_lshl_add_u32 v6, v7, 6, v6\nv_lshl_add_u32 v6, v2, 8, v6')
    k('s_lshl_b32 s23, s3, 12\ns_waitcnt vmcnt(0)')
    transpose8(k, 16, 48, 20, 21)
    for j in range(8): k('buffer_store_dwordx4 %s, v6, s[12:15], s23 offen offset:%d', vr(48 + 4 * j, 4), (j >> 2) * 1024 + (j & 3) * 16)
    k('K1_END:\ns_endpgm')
    return k.L, dict(vgpr=116, lds=1024, grid=168, block=256)
```

```python
from asmlib import *
from gen1 import *
HB, KB, TB, UVB = 0, 66560, 76800, 80896
K2LDS = UVB + 73728
def cmul(k, d, a, b, t):
    k('v_mul_f32 v%d, v%d, v%d\nv_mul_f32 v%d, v%d, v%d', t, a + 1, b + 1, t + 1, a + 1, b)
    k('v_fma_f32 v%d, v%d, v%d, -v%d\nv_fma_f32 v%d, v%d, v%d, v%d', d, a, b, t, d + 1, a, b + 1, t + 1)
import struct
def fhex(x): return '0x%08x' % struct.unpack('<I', struct.pack('<f', x))[0]
def cexp(k, d, er, pr, L, t):
    k('v_mul_f32 v%d, %s, v%d\nv_mul_f32 v%d, %s, v%d', t, fhex(L), er, t + 1, fhex(L), pr)
    k('v_exp_f32 v%d, v%d\nv_fract_f32 v%d, v%d', t, t, t + 1, t + 1)
    k('v_cos_f32 v%d, v%d\nv_sin_f32 v%d, v%d', d, t + 1, d + 1, t + 1)
    k('v_mul_f32 v%d, v%d, v%d\nv_mul_f32 v%d, v%d, v%d', d, d, t, d + 1, d + 1, t)
def unpack(k, d, s): k('v_lshlrev_b32 v%d, 16, v%d\nv_and_b32 v%d, 0xffff0000, v%d', d, s, d + 1, s)
def round2(k, a, t):
    k('v_cvt_pk_bf16_f32 v%d, v%d, v%d', t, a, a + 1); unpack(k, a, t)
def k2():
    k = K()
    k('s_cmp_ge_u32 s2, 256\ns_cbranch_scc1 K2_END')
    k('s_load_dwordx16 s[8:23], s[0:1], 8')
    ldptr(k, 4, 'ws')
    k('v_lshrrev_b32 v2, 6, v0\nv_and_b32 v1, 63, v0\ns_nop 0\nv_readfirstlane_b32 s3, v2')
    k('s_cmp_ge_u32 s3, 8\ns_cbranch_scc1 K2_SIDE')
    k('s_lshl_b32 s24, s2, 1')
    k('s_lshr_b32 s25, s3, 2\ns_add_u32 s26, s24, s25')
    k('v_and_b32 v3, 255, v0')
    k('s_lshl_b32 s27, s24, 8\nv_lshl_add_u32 v4, v3, 1, s27')
    k('v_lshrrev_b32 v5, 7, v3\nv_add_u32 v5, s24, v5\nv_lshlrev_b32 v5, 1, v5')
    k('s_lshl_b32 s27, s26, 12\nv_lshl_add_u32 v6, v3, 4, s27')
    k('v_lshlrev_b32 v7, 6, v3\nv_add_u32 v7, 0x%x, v7', STATS)
    k('s_lshl_b32 s27, s26, 2\ns_add_u32 s27, s27, 0x%x\nv_mov_b32 v8, s27', MOD)
    k('s_lshl_b32 s27, s26, 1\nv_mov_b32 v9, s27')
    k('s_waitcnt lgkmcnt(0)')
    for i in range(6): k('global_load_ushort v%d, v4, %s', 10 + i, sr(8 + 2 * i, 2))
    k('global_load_ushort v16, v5, s[20:21]')
    k('global_load_dwordx4 v[20:23], v6, s[4:5]')
    for i in range(4): k('global_load_dwordx4 %s, v7, s[4:5] offset:%d', vr(24 + 4 * i, 4), 16 * i)
    k('global_load_dword v17, v8, s[4:5]\nglobal_load_dword v18, v8, s[4:5] offset:2048')
    k('v_add_u32 v8, 0x1000, v8\nglobal_load_dword v19, v8, s[4:5]\nglobal_load_ushort v40, v9, s[22:23]')
    k('s_lshl_b32 s27, s25, 11\ns_add_u32 s27, s27, %d', TB)
    for i in range(8):
        k('v_lshl_add_u32 v52, v3, 3, %d\nv_cvt_f32_u32 v52, v52', i)
        bfround(k, 52, 52)
        k('v_cvt_u32_f32 v52, v52')
        k('v_bfe_u32 v53, v52, 4, 5\nv_and_b32 v54, 15, v52\nv_lshrrev_b32 v55, 9, v52')
        k('v_lshrrev_b32 v56, 2, v54\nv_lshl_add_u32 v56, v55, 2, v56\nv_add_u32 v56, 12, v56')
        k('v_cmp_eq_u32 vcc, 0, v55\nv_cndmask_b32 v54, v56, v54, vcc')
        k('v_lshl_add_u32 v53, v53, 6, s27\nv_lshl_add_u32 v%d, v54, 1, v53', 44 + i)
    k('v_mov_b32 v52, 0\nv_mov_b32 v53, 0\nv_mov_b32 v54, 0\nv_mov_b32 v55, 0')
    k('s_cmp_ge_u32 s3, 3\ns_cbranch_scc1 K2_NZ\ns_cmp_eq_u32 s3, 2\ns_cbranch_scc1 K2_ZH')
    k('s_mul_i32 s27, s3, 5120\ns_add_u32 s27, s27, %d\nv_lshrrev_b32 v56, 4, v1\nv_mul_u32_u24 v56, 1280, v56\nv_and_b32 v57, 15, v1\nv_lshl_add_u32 v56, v57, 4, v56\nv_add_u32 v56, s27, v56', KB)
    k('ds_write_b128 v56, v[52:55]\ns_branch K2_NZ')
    k('K2_ZH:\nv_lshrrev_b32 v56, 2, v1\nv_mul_u32_u24 v56, 4160, v56\nv_and_b32 v57, 3, v1\nv_lshl_add_u32 v56, v57, 4, v56')
    k('ds_write_b128 v56, v[52:55] offset:%d', HB + 4096)
    k('K2_NZ:')
    k('v_lshrrev_b32 v56, 7, v3\nv_mul_u32_u24 v56, 33792, v56\nv_and_b32 v57, 127, v3\nv_lshl_add_u32 v56, v57, 2, v56\nv_add_u32 v56, %d, v56', UVB)
    k('s_waitcnt vmcnt(9)')
    for i in range(7): k('v_lshlrev_b32 v%d, 16, v%d', 10 + i, 10 + i)
    k('v_mul_f32 v16, 0x3fb8aa3b, v16\nv_exp_f32 v16, v16'); bfround(k, 16, 16)
    k('v_mul_f32 v10, v10, v16\nv_mul_f32 v11, v11, v16\nv_mul_f32 v10, 0x3fb8aa3b, v10\nv_mul_f32 v11, 0.15915494, v11')
    k('s_cmp_ge_u32 s3, 4\ns_cbranch_scc1 K2_V')
    k('v_mul_f32 v12, v12, v16\nv_mul_f32 v13, v13, v16')
    cmul(k, 60, 14, 12, 58)
    cexp(k, 64, 10, 11, 16.0, 58); cexp(k, 66, 10, 11, 256.0, 58)
    cmul(k, 68, 60, 66, 58)
    A = [60, 62]; B = [68, 70]
    for i in range(16):
        a, b = A[i & 1], B[i & 1]
        k('v_cvt_pk_bf16_f32 v72, v%d, v%d\nv_cvt_pk_bf16_f32 v73, v%d, v%d', a, a + 1, b, b + 1)
        if i < 15:
            cmul(k, A[1 - (i & 1)], a, 64, 58); cmul(k, B[1 - (i & 1)], b, 64, 74)
        k('ds_write_b32 v56, v72 offset:%d\nds_write_b32 v56, v73 offset:%d', i * 528, (i + 16) * 528)
    k('s_branch K2_H')
    k('K2_V:')
    VO = 16896
    def wv(col, r): k('v_cvt_pk_bf16_f32 v72, v%d, -v%d\nds_write_b32 v56, v72 offset:%d', r, r + 1, VO + col * 528)
    k('v_mov_b32 v72, 0x3f80\nds_write_b32 v56, v72 offset:%d', VO)
    cexp(k, 64, 10, 11, 1.0, 58); cexp(k, 96, 10, 11, 8.0, 58)
    cexp(k, 76, 10, 11, 512.0, 58); cexp(k, 78, 10, 11, 1024.0, 58)
    k('v_mov_b32 v82, v64\nv_mov_b32 v83, v65')
    wv(1, 82); wv(8, 96)
    for j in range(1, 8):
        if j < 7: cmul(k, 80 + 2 * (j + 1), 80 + 2 * j, 64, 58)
        cmul(k, 80 + 2 * (j + 8), 80 + 2 * (j + 7), 64, 74)
        if j < 7: wv(j + 1, 80 + 2 * (j + 1))
        wv(j + 8, 80 + 2 * (j + 8))
    wv(16, 76); wv(20, 78)
    for i, j in enumerate((4, 8, 12)):
        cmul(k, 60, 76, 80 + 2 * j, 58); wv(17 + i, 60)
    cmul(k, 60, 78, 96, 58); wv(22, 60)
    cmul(k, 62, 76, 78, 58); wv(24, 62)
    cmul(k, 60, 62, 96, 58); wv(26, 60)
    cmul(k, 60, 78, 78, 58); wv(28, 60)
    k('K2_H:\ns_waitcnt vmcnt(0)')
    k('v_add_f32 v18, 1.0, v18'); bfround(k, 18, 18); k('v_lshlrev_b32 v40, 16, v40')
    for a in range(4):
        h = 60 + 2 * a
        unpack(k, h, 20 + a)
        k('v_sub_f32 v%d, v%d, v%d\nv_sub_f32 v%d, v%d, v%d', h, h, 24 + 4 * a, h + 1, h + 1, 26 + 4 * a); round2(k, h, 58)
        k('v_mul_f32 v%d, v%d, v%d\nv_mul_f32 v%d, v%d, v%d', h, h, 25 + 4 * a, h + 1, h + 1, 27 + 4 * a); round2(k, h, 58)
        k('v_mul_f32 v%d, v%d, v18\nv_mul_f32 v%d, v%d, v18', h, h, h + 1, h + 1); round2(k, h, 58)
        k('v_add_f32 v%d, v%d, v17\nv_add_f32 v%d, v%d, v17', h, h, h + 1, h + 1)
        k('v_cvt_pk_bf16_f32 v%d, v%d, v%d', 71 - a, h + 1, h)
        round2(k, h, 58)
    k('s_mul_i32 s27, s25, 33280\ns_add_u32 s27, s27, %d\nv_lshlrev_b32 v41, 4, v3\nv_sub_u32 v41, s27, v41', HB + 4080)
    k('ds_write_b128 v41, v[68:71]')
    k('v_and_b32 v52, 15, v1\nv_lshrrev_b32 v53, 4, v1')
    k('v_mul_u32_u24 v54, 528, v52\nv_and_b32 v55, 1, v53\nv_lshl_add_u32 v54, v55, 8, v54\nv_lshrrev_b32 v55, 1, v53\nv_lshl_add_u32 v54, v55, 7, v54')
    k('s_mul_i32 s27, s25, 33792\ns_add_u32 s27, s27, %d', UVB)
    k('s_bfe_u32 s28, s3, 0x10001\ns_and_b32 s29, s3, 1')
    k('s_mul_i32 s30, s28, 8448\ns_add_u32 s30, s30, s27\nv_add_u32 v55, s30, v54')
    k('s_mul_i32 s30, s29, 8448\ns_add_u32 s30, s30, s27\ns_add_u32 s30, s30, 16896\nv_add_u32 v54, s30, v54')
    k('s_waitcnt lgkmcnt(0)\ns_barrier')
    k('ds_read_b128 v[72:75], v41 offset:16')
    for ks in range(4): k('ds_read_b128 %s, v54 offset:%d\nds_read_b128 %s, v55 offset:%d', vr(96 + 8 * ks, 4), 16 * ks, vr(100 + 8 * ks, 4), 16 * ks)
    k('s_waitcnt lgkmcnt(0)')
    for ks in range(4): k('ds_read_b128 %s, v54 offset:%d\nds_read_b128 %s, v55 offset:%d', vr(128 + 8 * ks, 4), 64 + 16 * ks, vr(132 + 8 * ks, 4), 64 + 16 * ks)
    for ks in range(4): k('v_mfma_f32_16x16x32_bf16 v[24:27], %s, %s, %s', vr(96 + 8 * ks, 4), vr(100 + 8 * ks, 4), 'v[24:27]' if ks else '0')
    for i in range(6): k('v_mov_b32 v%d, v%d', 76 + i, 69 + i)
    for i in range(6): k('v_alignbit_b32 v%d, v%d, v%d, 16\nv_alignbit_b32 v%d, v%d, v%d, 16', 82 + i, 69 + i, 68 + i, 88 + i, 70 + i, 69 + i)
    k('s_waitcnt lgkmcnt(0)')
    for ks in range(4): k('v_mfma_f32_16x16x32_bf16 v[24:27], %s, %s, v[24:27]', vr(128 + 8 * ks, 4), vr(132 + 8 * ks, 4))
    for s_, r in ((1, 82), (2, 76), (3, 88), (4, 70), (5, 84), (6, 78), (7, 90)):
        k('ds_write_b128 v41, %s offset:%d', vr(r, 4), 4160 * s_)
    k('s_lshl_b32 s27, s25, 11\ns_lshl_b32 s30, s28, 10\ns_add_u32 s27, s27, s30\ns_lshl_b32 s30, s29, 5\ns_add_u32 s27, s27, s30\ns_add_u32 s27, s27, %d', TB)
    k('v_lshl_add_u32 v54, v52, 6, s27\nv_lshl_add_u32 v54, v53, 3, v54')
    k('v_cvt_pk_bf16_f32 v28, v24, v25\nv_cvt_pk_bf16_f32 v29, v26, v27\nds_write_b64 v54, v[28:29]')
    k('s_mul_i32 s27, s25, 5120\ns_add_u32 s27, s27, %d', KB + 256)
    k('v_and_b32 v54, 3, v3\nv_mul_u32_u24 v54, 1280, v54\nv_lshrrev_b32 v55, 2, v3\nv_lshl_add_u32 v54, v55, 4, v54\nv_add_u32 v54, s27, v54')
    k('s_waitcnt lgkmcnt(0)\ns_barrier')
    for i in range(8): k('ds_read_u16 v%d, v%d', 28 + i, 44 + i)
    k('s_and_b32 s28, s3, 3')
    k('v_sub_u32 v42, 7, v52\nv_and_b32 v42, 7, v42\nv_mul_u32_u24 v42, 4160, v42')
    k('v_sub_u32 v43, 2047, v52\nv_lshrrev_b32 v43, 3, v43\nv_add_u32 v43, v43, v53\nv_lshl_add_u32 v42, v43, 4, v42')
    k('s_mul_i32 s27, s25, 33280\ns_lshl_b32 s30, s28, 8\ns_sub_u32 s27, s27, s30\ns_add_u32 s27, s27, %d\nv_add_u32 v42, s27, v42', (HB - 192 - 3072 - 32) & 0xffffffff)
    k('v_mul_u32_u24 v43, 1280, v53\nv_lshl_add_u32 v43, v52, 4, v43')
    k('s_mul_i32 s27, s25, 5120\ns_lshl_b32 s30, s28, 6\ns_sub_u32 s27, s27, s30\ns_add_u32 s27, s27, %d\nv_add_u32 v43, s27, v43', KB + 256 - 48)
    k('s_waitcnt lgkmcnt(0)')
    for a in range(4): k('v_lshl_or_b32 v%d, v%d, 16, v%d', 24 + a, 29 + 2 * a, 28 + 2 * a)
    k('ds_write_b128 v54, v[24:27]\ns_waitcnt lgkmcnt(0)\ns_barrier')
    ACC = 68; FB = [[100 + 4 * i for i in range(12)], [148, 152, 156, 160, 164, 24, 28, 32, 36, 44, 48, 56]]
    def reads(e):
        f = FB[e & 1]
        for u in range(4): k('ds_read_b128 %s, v43 offset:%d', vr(f[u], 4), 256 * u + 16 * (3 - e))
        for j in range(4):
            for ct in range(2): k('ds_read_b128 %s, v42 offset:%d', vr(f[4 + 2 * j + ct], 4), 64 * (3 - e) + 1024 * (3 - j) + 32 * (1 - ct))
    reads(0)
    for e in range(4):
        k('s_waitcnt lgkmcnt(0)')
        if e < 3: reads(e + 1)
        f = FB[e & 1]
        for j in range(4):
            for R in range(j, 4):
                for ct in range(2):
                    a = ACC + 8 * R + 4 * ct
                    k('v_mfma_f32_16x16x32_bf16 %s, %s, %s, %s', vr(a, 4), vr(f[4 + 2 * j + ct], 4), vr(f[R - j], 4), '0' if (e == 0 and j == 0) else vr(a, 4))
    k('s_mul_i32 s27, s3, 9216\ns_add_u32 s27, s27, %d\nv_mul_u32_u24 v54, 144, v52\nv_lshl_add_u32 v54, v53, 4, v54\nv_add_u32 v54, s27, v54', UVB)
    for R in range(4):
        for ct in range(2): k('ds_write_b128 v54, %s offset:%d', vr(ACC + 8 * R + 4 * ct, 4), 2304 * R + 64 * ct)
    k('s_mul_i32 s27, s25, 36864\ns_add_u32 s27, s27, %d\nv_lshrrev_b32 v54, 2, v3\nv_mul_u32_u24 v54, 144, v54\nv_and_b32 v55, 3, v3\nv_lshl_add_u32 v54, v55, 5, v54\nv_add_u32 v54, s27, v54', UVB)
    k('s_waitcnt lgkmcnt(0)\ns_barrier')
    for p in range(4): k('ds_read_b128 %s, v54 offset:%d\nds_read_b128 %s, v54 offset:%d', vr(100 + 8 * p, 4), 9216 * p, vr(104 + 8 * p, 4), 9216 * p + 16)
    for a in range(4):
        h = 60 + 2 * a
        k('v_mul_f32 v%d, v%d, v40\nv_mul_f32 v%d, v%d, v40', h, h, h + 1, h + 1); round2(k, h, 58)
    k('s_waitcnt lgkmcnt(0)')
    for i in range(8): k('v_add_f32 v%d, v%d, v%d\nv_add_f32 v%d, v%d, v%d\nv_add_f32 v%d, v%d, v%d', 100 + i, 100 + i, 108 + i, 116 + i, 116 + i, 124 + i, 100 + i, 100 + i, 116 + i)
    for a in range(4):
        y = 100 + 2 * a; h = 60 + 2 * a
        round2(k, y, 58)
        k('v_add_f32 v%d, v%d, v%d\nv_add_f32 v%d, v%d, v%d', y, y, h, y + 1, y + 1, h + 1); round2(k, y, 58)
        k('v_mul_f32 v%d, v%d, v19\nv_mul_f32 v%d, v%d, v19', y, y, y + 1, y + 1); round2(k, y, 58)
        unpack(k, h, 20 + a)
        k('v_add_f32 v%d, v%d, v%d\nv_add_f32 v%d, v%d, v%d\nv_cvt_pk_bf16_f32 v%d, v%d, v%d', y, y, h, y + 1, y + 1, h + 1, 24 + a, y, y + 1)
    k('v_add_u32 v6, 0x%x, v6\nglobal_store_dwordx4 v6, v[24:27], s[4:5]\ns_endpgm', X1T)
    k('K2_SIDE:\ns_cmp_ge_u32 s2, 224\ns_cbranch_scc1 K2_END')
    k('s_cmp_ge_u32 s2, 112\ns_cselect_b32 s24, 1, 0\ns_mul_i32 s25, s24, 112\ns_sub_u32 s25, s2, s25')
    k('s_lshl_b32 s26, s24, 3\ns_add_u32 s26, s26, 80\ns_waitcnt lgkmcnt(0)\ns_load_dwordx2 s[8:9], s[0:1], s26')
    k('s_sub_u32 s3, s3, 8')
    k('v_lshrrev_b32 v2, 2, v1\nv_and_b32 v3, 3, v1\nv_lshlrev_b32 v4, 5, v2\nv_lshl_add_u32 v4, v3, 2, v4')
    k('v_lshlrev_b32 v5, 2, v4\nv_add_u32 v5, 0x%x, v5', MOD + 3 * 2048)
    k('global_load_dwordx4 v[8:11], v5, s[4:5]\nglobal_load_dwordx4 v[12:15], v5, s[4:5] offset:64')
    k('global_load_dwordx4 v[16:19], v5, s[4:5] offset:2048\nglobal_load_dwordx4 v[20:23], v5, s[4:5] offset:2112')
    k('s_lshl_b32 s27, s25, 5\ns_lshl_b32 s28, s3, 4\ns_add_u32 s27, s27, s28\nv_mul_u32_u24 v6, 3584, v4\nv_add_u32 v6, s27, v6')
    k('s_waitcnt lgkmcnt(0)')
    for i in range(8):
        k('v_add_u32 v7, %d, v6\nglobal_load_dwordx4 %s, v7, s[8:9]', ((i & 3) + 16 * (i >> 2)) * 3584, vr(24 + 4 * i, 4))
    k('s_mul_i32 s27, s25, 0x2493\ns_lshr_b32 s27, s27, 16\ns_mul_i32 s28, s27, 7\ns_sub_u32 s28, s25, s28')
    k('s_mul_i32 s27, s27, 224\ns_mul_i32 s29, s24, 7\ns_add_u32 s27, s27, s29\ns_add_u32 s27, s27, s28\ns_lshl_b32 s27, s27, 10\ns_lshl_b32 s28, s3, 7\ns_add_u32 s27, s27, s28\ns_add_u32 s27, s27, 0x%x', WP)
    k('v_mul_u32_u24 v6, 14336, v2\nv_lshl_add_u32 v6, v3, 8, v6\nv_add_u32 v6, s27, v6')
    k('s_mov_b32 s22, 0x3f803f80\ns_waitcnt vmcnt(8)')
    for i in range(8): k('v_add_f32 v%d, 1.0, v%d', 16 + i, 16 + i); bfround(k, 16 + i, 16 + i)
    for i in range(16): k('v_mov_b32 v%d, 0', 96 + i)
    k('s_waitcnt vmcnt(0)')
    for a in range(4):
        for w in range(4):
            unpack(k, 112, 24 + 8 * a + w); unpack(k, 114, 28 + 8 * a + w)
            k('v_fmac_f32 v%d, v112, v%d\nv_fmac_f32 v%d, v113, v%d', 104 + 2 * w, 8 + 2 * a, 105 + 2 * w, 8 + 2 * a)
            k('v_fmac_f32 v%d, v114, v%d\nv_fmac_f32 v%d, v115, v%d', 104 + 2 * w, 9 + 2 * a, 105 + 2 * w, 9 + 2 * a)
            k('v_mul_f32 v112, v112, v%d\nv_mul_f32 v113, v113, v%d\nv_mul_f32 v114, v114, v%d\nv_mul_f32 v115, v115, v%d', 16 + 2 * a, 16 + 2 * a, 17 + 2 * a, 17 + 2 * a)
            k('v_cvt_pk_bf16_f32 v%d, v112, v114\nv_cvt_pk_bf16_f32 v%d, v113, v115', 60 + 8 * w + a, 64 + 8 * w + a)
    for j in range(8):
        k('global_store_dwordx4 v6, %s, s[4:5] offset:%d', vr(60 + 4 * j, 4), 16 * j)
        for a in range(4): k('v_dot2_f32_bf16 v%d, v%d, s22, v%d', 96 + j, 60 + 4 * j + a, 96 + j)
    for b in (96, 104):
        for i in range(4): k('v_permlane32_swap_b32 v%d, v%d', b + i, b + i + 4)
        for i in range(4): k('v_add_f32 v%d, v%d, v%d', b + i, b + i, b + i + 4)
        for i in range(2): k('v_permlane16_swap_b32 v%d, v%d', b + i, b + i + 2)
        for i in range(2): k('v_add_f32 v%d, v%d, v%d', b + i, b + i, b + i + 2)
    rowsum16(k, [96, 97, 104, 105])
    k('s_mul_i32 s27, s24, 14336\ns_lshl_b32 s28, s25, 6\ns_add_u32 s27, s27, s28\ns_lshl_b32 s28, s3, 5\ns_add_u32 s27, s27, s28\ns_add_u32 s27, s27, 0x%x', ST)
    k('v_lshrrev_b32 v6, 4, v1\nv_lshl_add_u32 v6, v6, 3, s27\nv_add_u32 v7, 7168, v6')
    k('v_and_b32 v8, 15, v1\nv_cmp_eq_u32 vcc, 0, v8\ns_and_saveexec_b64 s[24:25], vcc')
    k('global_store_dwordx2 v6, v[96:97], s[4:5]\nglobal_store_dwordx2 v7, v[104:105], s[4:5]')
    k('K2_END:\ns_endpgm')
    return k.L, dict(vgpr=168, lds=K2LDS, grid=256, block=640)
```

```python
from asmlib import *
from gen1 import *
from gen2 import unpack, fhex
STG = 45056
NST = 3
STL = 0
RB = 3072
K3LDS = RB + NST * STG
def k3():
    k = K()
    k('s_cmp_ge_u32 s2, 256\ns_cbranch_scc1 K3_END')
    ldptr(k, 4, 'ws')
    k('v_lshrrev_b32 v2, 6, v0\nv_and_b32 v1, 63, v0\ns_nop 0\nv_readfirstlane_b32 s3, v2')
    k('s_and_b32 s20, s2, 7\ns_lshr_b32 s21, s2, 3')
    k('s_lshr_b32 s22, s20, 2\ns_lshl_b32 s22, s22, 3\ns_lshr_b32 s23, s21, 2\ns_add_u32 s22, s22, s23')
    k('s_and_b32 s23, s20, 3\ns_lshl_b32 s23, s23, 2\ns_and_b32 s24, s21, 3\ns_add_u32 s23, s23, s24')
    k('s_waitcnt lgkmcnt(0)')
    mksrd(k, 8, 0x200000, X1T, 4); mksrd(k, 12, 0x380000, WP, 4); mksrd(k, 16, 0x1330000, 0, 4)
    k('v_lshrrev_b32 v3, 4, v1\nv_lshl_add_u32 v4, v2, 3, v3')
    k('v_bfe_u32 v5, v1, 1, 3\nv_xor_b32 v6, v5, v3\nv_xor_b32 v7, 4, v6')
    k('v_and_b32 v8, 1, v1\nv_lshlrev_b32 v8, 4, v8\ns_lshl_b32 s24, s22, 8\nv_add_u32 v8, s24, v8\nv_lshl_add_u32 v8, v4, 12, v8')
    k('v_lshl_add_u32 v10, v6, 5, v8\nv_lshl_add_u32 v11, v7, 5, v8\nv_add_u32 v11, 0x4000, v11')
    k('v_lshlrev_b32 v12, 4, v0')
    k('s_mul_i32 s25, s23, %d', 16 * 14336)
    k('s_lshl_b32 s26, s3, 11\ns_add_u32 s26, s26, 3072\ns_lshl_b32 s27, s3, 10\ns_add_u32 s27, s27, 19456')
    def issue(st):
        b = (st % NST) * STG
        k('s_add_u32 m0, s26, %d\ns_mov_b32 s28, %d\nbuffer_load_dwordx4 v10, s[8:11], s28 offen lds', b, st * 64 * 4096)
        k('s_add_u32 m0, s26, %d\nbuffer_load_dwordx4 v11, s[8:11], s28 offen lds', b + 1024)
        for p in range(4):
            if p == 3: k('s_cmp_ge_u32 s3, 4\ns_cbranch_scc1 K3_SK%d', st)
            k('s_add_u32 m0, s27, %d\ns_add_u32 s28, s25, %d\nbuffer_load_dwordx4 v12, s[12:15], s28 offen lds', b + p * 8192, st * 28672 + p * 8192)
        k('K3_SK%d:', st)
    k('s_mov_b32 s28, 0x24924925\nv_mul_hi_u32 v13, v0, s28\nv_lshrrev_b32 v13, 4, v13')
    k('v_mul_u32_u24 v14, 112, v13\nv_sub_u32 v14, v0, v14\nv_mul_u32_u24 v15, 7168, v13\nv_lshl_add_u32 v15, v14, 2, v15')
    k('s_mul_i32 s28, s23, 448\ns_add_u32 s28, s28, 0x%x', ST)
    k('v_cmp_gt_u32 vcc, 448, v0\nv_cndmask_b32 v15, 0, v15, vcc\nbuffer_load_dword v16, v15, s[16:19], s28 offen')
    issue(0); issue(1)
    k('v_and_b32 v20, 15, v1\nv_lshrrev_b32 v21, 4, v1')
    k('s_and_b32 s29, s3, 3\ns_lshr_b32 s30, s3, 2')
    k('v_lshrrev_b32 v22, 2, v20\nv_lshl_add_u32 v22, v21, 2, v22\nv_and_b32 v23, 7, v22')
    k('s_lshl_b32 s31, s29, 1\nv_xor_b32 v24, s31, v23\nv_xor_b32 v25, 1, v24')
    k('v_and_b32 v26, 3, v20\nv_lshlrev_b32 v26, 3, v26\nv_lshl_add_u32 v26, v22, 8, v26\nv_add_u32 v26, 3072, v26')
    k('v_lshl_add_u32 v24, v24, 5, v26\nv_lshl_add_u32 v25, v25, 5, v26')
    k('s_lshl_b32 s31, s30, 12\ns_add_u32 s31, s31, 19456\nv_lshl_add_u32 v27, v1, 4, s31')
    AD = [[24, 25, 27], [3, 4, 5], [6, 7, 8]]
    for sl in (1, 2):
        for i in range(3): k('v_add_u32 v%d, %d, v%d', AD[sl][i], sl * STG, AD[0][i])
    k('s_mov_b32 s34, 0x3f803f80')
    for i in range(4): k('v_mov_b32 v%d, 0', 28 + i)
    k('s_lshl_b32 s31, s22, 17\ns_lshl_b32 s32, s29, 15\ns_add_u32 s31, s31, s32\ns_lshl_b32 s32, s23, 6\ns_add_u32 s31, s31, s32\ns_add_u32 s31, s31, 0x%x', X1R)
    k('v_lshl_add_u32 v19, v20, 10, s31\nv_lshl_add_u32 v19, v21, 3, v19\nv_add_u32 v18, 0x4000, v19')
    k('s_cmp_ge_u32 s3, 4\ns_cbranch_scc1 K3_B')
    def body(nft, tag, ndma):
        ACC = 0
        XB = [32, 40]; WB = [48, 48 + 8 * nft]
        def reads(ks):
            ad = AD[(ks >> 1) % NST]; b = 0; h = ks & 1; xb = XB[h]; wb = WB[h]
            for lt in range(2):
                k('ds_read_b64_tr_b16 %s, v%d offset:%d\nds_read_b64_tr_b16 %s, v%d offset:%d', vr(xb + 4 * lt, 2), ad[lt], b + 8192 * h, vr(xb + 4 * lt + 2, 2), ad[lt], b + 8192 * h + 4096)
            for m in range(2):
                for ft in range(nft): k('ds_read_b128 %s, v%d offset:%d', vr(wb + 4 * (m * nft + ft), 4), ad[2], b + 14336 * h + 7168 * m + 1024 * ft)
        for ks in range(16):
            st = ks >> 1; h = ks & 1
            if h == 0:
                k('s_waitcnt vmcnt(%d)' % (ndma if st < 7 else 0))
                if st == 0: k('v_lshlrev_b32 v15, 2, v0\nds_write_b32 v15, v16')
                k('s_waitcnt lgkmcnt(0)\ns_barrier')
                if st + 2 < 8: issue_b(st + 2, tag)
                if st == 0 or True: reads(ks)
            k('s_waitcnt lgkmcnt(0)')
            if h == 0: reads(ks + 1)
            xb = XB[h]; wb = WB[h]
            n = 0
            for m in range(2):
                for ft in range(nft):
                    for lt in range(2):
                        a = ACC + (m * nft + ft) * 8 + 4 * lt
                        k('v_mfma_f32_16x16x32_bf16 %s, %s, %s, %s', ar(a, 4), vr(wb + 4 * (m * nft + ft), 4), vr(xb + 4 * lt, 4), '0' if ks == 0 else ar(a, 4))
                        if nft == 3 and n < 8:
                            r = xb + n
                            k('v_dot2_f32_bf16 v%d, v%d, s34, v%d\nv_dot2_f32_bf16 v%d, v%d, v%d, v%d', 28 + (n >> 2), r, 28 + (n >> 2), 30 + (n >> 2), r, r, 30 + (n >> 2))
                        n += 1
            if nft == 4:
                k('s_cmp_lg_u32 s23, %d\ns_cbranch_scc1 K3_NX%d', ks, ks)
                k('buffer_store_dwordx2 %s, v19, s[16:19], 0 offen\nbuffer_store_dwordx2 %s, v19, s[16:19], 0 offen offset:32', vr(xb, 2), vr(xb + 2, 2))
                k('buffer_store_dwordx2 %s, v18, s[16:19], 0 offen\nbuffer_store_dwordx2 %s, v18, s[16:19], 0 offen offset:32', vr(xb + 4, 2), vr(xb + 6, 2))
                k('K3_NX%d:', ks)
    def issue_b(st, tag):
        b = (st % NST) * STG
        k('s_add_u32 m0, s26, %d\ns_mov_b32 s28, %d\nbuffer_load_dwordx4 v10, s[8:11], s28 offen lds', b, st * 64 * 4096)
        k('s_add_u32 m0, s26, %d\nbuffer_load_dwordx4 v11, s[8:11], s28 offen lds', b + 1024)
        for p in range(4 if tag == 'A' else 3):
            k('s_add_u32 m0, s27, %d\ns_add_u32 s28, s25, %d\nbuffer_load_dwordx4 v12, s[12:15], s28 offen lds', b + p * 8192, st * 28672 + p * 8192)
    def epilogue(nft, ft0, tag):
        k('s_lshl_b32 s31, s29, 8\ns_add_u32 s31, s31, %d\nv_lshl_add_u32 v22, v20, 3, s31', 2048)
        k('ds_read_b64 v[32:33], v22\nds_read_b64 v[34:35], v22 offset:128')
        k('v_lshlrev_b32 v23, 4, v21')
        k('s_lshl_b32 s31, s22, 1\ns_lshr_b32 s32, s29, 1\ns_add_u32 s31, s31, s32\ns_mul_i32 s31, s31, %d', 56 * 4096)
        k('s_and_b32 s32, s29, 1\ns_lshl_b32 s32, s32, 11\ns_add_u32 s31, s31, s32\ns_add_u32 s31, s31, 0x%x\nv_lshl_add_u32 v26, v1, 4, s31', HH)
        k('s_mul_i32 s33, s23, 7')
        for ft in range(nft):
            for v in range(4): k('ds_read_b128 %s, v23 offset:%d', vr(36 + 4 * v, 4), STL + 448 * v + 64 * (ft0 + ft))
            k('s_add_u32 s31, s33, %d\ns_lshr_b32 s32, s31, 1\ns_lshl_b32 s32, s32, 12\ns_and_b32 s31, s31, 1\ns_lshl_b32 s31, s31, 3\ns_add_u32 s31, s31, s32', ft0 + ft)
            k('s_waitcnt lgkmcnt(0)')
            for lt in range(2):
                m, r = 32 + 2 * lt, 33 + 2 * lt
                for i in range(4):
                    k('v_accvgpr_read_b32 v%d, a%d\nv_accvgpr_read_b32 v%d, a%d', 52 + i, ft * 8 + 4 * lt + i, 56 + i, (nft + ft) * 8 + 4 * lt + i)
                for i in range(4):
                    k('v_fma_f32 v%d, -v%d, v%d, v%d\nv_fma_f32 v%d, -v%d, v%d, v%d', 52 + i, m, 36 + i, 52 + i, 56 + i, m, 44 + i, 56 + i)
                for i in range(4):
                    k('v_fma_f32 v%d, v%d, v%d, v%d\nv_fma_f32 v%d, v%d, v%d, v%d', 52 + i, r, 52 + i, 40 + i, 56 + i, r, 56 + i, 48 + i)
                for i in range(4): k('v_mul_f32 v%d, 0xbfb8aa3b, v%d', 60 + i, 52 + i)
                for i in range(4): k('v_exp_f32 v%d, v%d', 60 + i, 60 + i)
                for i in range(4): k('v_mul_f32 v%d, v%d, v%d\nv_add_f32 v%d, 1.0, v%d', 52 + i, 52 + i, 56 + i, 60 + i, 60 + i)
                for i in range(4): k('v_rcp_f32 v%d, v%d', 60 + i, 60 + i)
                for i in range(4): k('v_mul_f32 v%d, v%d, v%d', 52 + i, 52 + i, 60 + i)
                o = 64 + 2 * ((2 * ft + lt) & 3)
                k('v_cvt_pk_bf16_f32 v%d, v52, v53\nv_cvt_pk_bf16_f32 v%d, v54, v55', o, o + 1)
                k('buffer_store_dwordx2 %s, v26, s[16:19], s31 offen offset:%d', vr(o, 2), 1024 * lt)
        k('s_endpgm')
    body(4, 'A', 6)
    k('s_waitcnt lgkmcnt(0)\ns_barrier')
    epilogue(4, 0, 'A')
    k('K3_B:')
    body(3, 'B', 5)
    for r in range(28, 32): k('v_mov_b32 v%d, v%d', r + 8, r)
    for r in range(28, 32): k('v_permlane32_swap_b32 v%d, v%d', r, r + 8)
    for r in range(28, 32): k('v_add_f32 v%d, v%d, v%d', r, r, r + 8)
    for r in range(28, 32): k('v_mov_b32 v%d, v%d', r + 8, r)
    for r in range(28, 32): k('v_permlane16_swap_b32 v%d, v%d', r, r + 8)
    for r in range(28, 32): k('v_add_f32 v%d, v%d, v%d', r, r, r + 8)
    lnstats(k, 28, 30, 32, 33, 40); lnstats(k, 29, 31, 34, 35, 41)
    k('s_lshl_b32 s31, s29, 8\ns_add_u32 s31, s31, %d\nv_lshl_add_u32 v22, v20, 3, s31', 2048)
    k('ds_write_b64 v22, v[32:33]\nds_write_b64 v22, v[34:35] offset:128')
    k('s_waitcnt lgkmcnt(0)\ns_barrier')
    epilogue(3, 4, 'B')
    k('K3_END:\ns_endpgm')
    return k.L, dict(vgpr=176, acc=112, lds=K3LDS, grid=256, block=512)
def k4():
    k = K()
    DEPTH = 6
    k('s_cmp_ge_u32 s2, 256\ns_cbranch_scc1 K4_END')
    ldptr(k, 4, 'ws'); ldptr(k, 6, 'out')
    k('v_lshrrev_b32 v2, 6, v0\nv_and_b32 v1, 63, v0\ns_nop 0\nv_readfirstlane_b32 s3, v2')
    k('s_and_b32 s20, s2, 7\ns_lshr_b32 s21, s2, 3')
    k('s_lshr_b32 s22, s20, 1\ns_lshl_b32 s22, s22, 3\ns_lshr_b32 s23, s21, 2\ns_add_u32 s22, s22, s23')
    k('s_and_b32 s23, s20, 1\ns_lshl_b32 s23, s23, 2\ns_and_b32 s24, s21, 3\ns_add_u32 s23, s23, s24')
    k('s_waitcnt lgkmcnt(0)')
    mksrd(k, 8, 0x700000, HH, 4); mksrd(k, 12, 0x1C0000, W2F, 4); mksrd(k, 16, 0x1330000, 0, 4); mksrd(k, 24, 0x200000, 0, 6)
    k('s_mul_i32 s28, s22, %d\ns_mul_i32 s29, s23, %d\ns_lshl_b32 s30, s3, 12\ns_add_u32 s28, s28, s30\ns_add_u32 s29, s29, s30', 56 * 4096, 56 * 4096)
    k('v_lshlrev_b32 v3, 4, v1')
    def loads(i):
        b = 16 + 32 * (i % DEPTH)
        for t in range(4):
            k('buffer_load_dwordx4 %s, v3, s[12:15], s29 offen offset:%d', vr(b + 4 * t, 4), 1024 * t)
            k('buffer_load_dwordx4 %s, v3, s[8:11], s28 offen offset:%d', vr(b + 16 + 4 * t, 4), 1024 * t)
        k('s_add_u32 s28, s28, 16384\ns_add_u32 s29, s29, 16384')
    for i in range(DEPTH): loads(i)
    k('v_and_b32 v4, 15, v1\nv_lshrrev_b32 v5, 4, v1')
    for i in range(14):
        rem = min(DEPTH, 14 - i) - 1
        k('s_waitcnt vmcnt(%d)', 8 * rem)
        b = 16 + 32 * (i % DEPTH)
        for lt in range(4):
            for dt in range(4):
                a = 16 * lt + 4 * dt
                k('v_mfma_f32_16x16x32_bf16 %s, %s, %s, %s', ar(a, 4), vr(b + 4 * dt, 4), vr(b + 16 + 4 * lt, 4), '0' if i == 0 else ar(a, 4))
        if i + DEPTH < 14: loads(i + DEPTH)
    k('s_lshl_b32 s30, s22, 16\ns_lshl_b32 s31, s3, 14\ns_add_u32 s30, s30, s31\ns_lshl_b32 s31, s23, 7\ns_add_u32 s30, s30, s31')
    k('v_lshl_add_u32 v6, v4, 10, s30\nv_lshl_add_u32 v6, v5, 5, v6\ns_mov_b32 s31, 0x%x', X1R)
    k('buffer_load_dwordx4 v[16:19], v6, s[16:19], s31 offen\nbuffer_load_dwordx4 v[20:23], v6, s[16:19], s31 offen offset:16')
    k('s_lshl_b32 s31, s23, 8\ns_add_u32 s31, s31, 0x%x\nv_lshlrev_b32 v7, 6, v5', MOD + 5 * 2048)
    for dt in range(4): k('buffer_load_dwordx4 %s, v7, s[16:19], s31 offen offset:%d', vr(24 + 4 * dt, 4), 16 * dt)
    k('s_lshl_b32 s31, s3, 14\nv_add_u32 v8, s31, v3')
    for t in range(16): k('ds_write_b128 v8, %s offset:%d', ar(4 * t, 4), 1024 * t)
    k('s_lshl_b32 s31, s3, 12\nv_add_u32 v8, s31, v3')
    k('s_waitcnt lgkmcnt(0)\ns_barrier')
    for w in range(4):
        for dt in range(4): k('ds_read_b128 %s, v8 offset:%d', vr(48 + 16 * w + 4 * dt, 4), 16384 * w + 1024 * dt)
        if w == 1: k('s_waitcnt lgkmcnt(0)')
    k('s_waitcnt lgkmcnt(0)')
    for i in range(16): k('v_add_f32 v%d, v%d, v%d\nv_add_f32 v%d, v%d, v%d\nv_add_f32 v%d, v%d, v%d', 48 + i, 48 + i, 64 + i, 80 + i, 80 + i, 96 + i, 48 + i, 48 + i, 80 + i)
    k('s_waitcnt vmcnt(0)')
    for a in range(8):
        unpack(k, 40, 16 + a)
        k('v_fmac_f32 v40, v%d, v%d\nv_fmac_f32 v41, v%d, v%d\nv_cvt_pk_bf16_f32 v%d, v40, v41', 48 + 2 * a, 24 + 2 * a, 49 + 2 * a, 25 + 2 * a, 112 + a)
    k('buffer_store_dwordx4 v[112:115], v6, s[24:27], 0 offen\nbuffer_store_dwordx4 v[116:119], v6, s[24:27], 0 offen offset:16')
    k('K4_END:\ns_endpgm')
    return k.L, dict(vgpr=208 + 64, acc=208, lds=65536, grid=256, block=256)
```

```python
import sys
from asmlib import fix
import gen1, gen2, gen34
NAME = 'adaLN_cond__ssm_conv_s4__glu_gated_swiglu__prompt'
hdr = open('cdna_kernels/%s.s.ref' % NAME).read().split('; Override launch')[0]
ks = [('k1_prep_kernel', gen1.k1), ('k2_conv_kernel', gen2.k2), ('k3_gemm1_kernel', gen34.k3), ('k4_gemm2_kernel', gen34.k4)]
out = [hdr.rstrip()]
bodies = []
for n, f in ks:
    L, info = f(); bodies.append((n, fix(L), info))
    out.append('; @launch kernel=%s grid=(%d,1,1) block=(%d,1,1) lds=%d' % (n, info['grid'], info['block'], info['lds']))
out.append('.amdgcn_target "amdgcn-amd-amdhsa--gfx950"\n.text')
for n, L, info in bodies:
    out.append('.globl %s\n.p2align 8\n.type %s,@function\n%s:' % (n, n, n)); out += L
out.append('.section .rodata,"a"')
for n, L, info in bodies:
    acc = info.get('acc', (info['vgpr'] + 3) // 4 * 4)
    out.append('.p2align 6\n.amdhsa_kernel %s\n  .amdhsa_next_free_vgpr %d\n  .amdhsa_next_free_sgpr 64\n  .amdhsa_accum_offset %d\n  .amdhsa_group_segment_fixed_size 0\n  .amdhsa_kernarg_size 144\n  .amdhsa_user_sgpr_count 2\n  .amdhsa_user_sgpr_kernarg_segment_ptr 1\n  .amdhsa_system_sgpr_workgroup_id_x 1\n.end_amdhsa_kernel' % (n, info['vgpr'], acc))
open(sys.argv[1] if len(sys.argv) > 1 else 'cdna_kernels/%s.s' % NAME, 'w').write('\n'.join(out) + '\n')
```

```python
import re
REG = re.compile(r'\b([vas])\[(\d+):(\d+)\]|\b([vas])(\d+)\b|\b(vcc|exec|m0)\b')
def regs(op):
    out = set()
    for m in REG.finditer(op):
        if m.group(1): out |= {(m.group(1), i) for i in range(int(m.group(2)), int(m.group(3)) + 1)}
        elif m.group(4): out.add((m.group(4), int(m.group(5))))
        else: out.add((m.group(6), 0))
    return out
TRANS = ('v_exp_', 'v_log_', 'v_rcp_', 'v_rsq_', 'v_sqrt_', 'v_sin_', 'v_cos_')
class Ins:
    def __init__(s, text):
        s.text = text
        t = text.split(';')[0].strip()
        s.mn = t.split()[0] if t else ''
        rest = t[len(s.mn):].strip()
        ops = [o.strip() for o in re.split(r',(?![^\[]*\])', rest)] if rest else []
        s.ops = ops
        mn = s.mn
        s.valu = mn.startswith('v_') and not mn.startswith('v_mfma')
        s.mfma = mn.startswith('v_mfma')
        s.vmem = mn.startswith(('buffer_', 'global_'))
        s.ds = mn.startswith('ds_')
        s.salu = mn.startswith('s_')
        s.trans = mn.startswith(TRANS)
        s.dpp = '_dpp' in mn
        s.perml = mn.startswith('v_permlane')
        s.rdl = mn.startswith(('v_readlane', 'v_readfirstlane'))
        s.W = set(); s.R = set()
        allr = [regs(o) for o in ops]
        if s.valu or s.mfma:
            s.swap = mn.startswith('v_swap')
            nd = 2 if ('_co_' in mn or s.perml or s.swap) else 1
            for i, r in enumerate(allr):
                if i < nd: s.W |= r
                if i >= nd or s.perml or s.swap or (i == 0 and (mn.startswith(('v_fmac', 'v_dot2c')) or s.dpp)): s.R |= r
            if mn.startswith('v_cmpx'): s.W.add(('exec', 0))
        elif s.vmem or s.ds:
            isload = ('load' in mn or 'read' in mn or 'permute' in mn or 'swizzle' in mn) and ' lds' not in t and '_lds_' not in mn
            for i, r in enumerate(allr):
                if i == 0 and isload: s.W |= r
                else: s.R |= r
            s.ldsdma = (' lds' in t or '_lds_' in mn)
        elif s.salu:
            for i, r in enumerate(allr):
                if i == 0 and not mn.startswith(('s_cmp', 's_cbranch', 's_branch', 's_waitcnt', 's_nop', 's_barrier', 's_setprio', 's_sleep', 's_endpgm')): s.W |= r
                else: s.R |= r
        if s.mfma:
            s.passes = 8 if '32x32' in mn else 4
            s.A = allr[1] | allr[2]; s.C = allr[3]; s.D = allr[0]
        s.states = 1
        if mn == 's_nop': s.states = int(ops[0], 0) + 1
        s.widestore = (s.vmem and 'store' in mn and ('x4' in mn or 'x3' in mn))
def need(p, c):
    n = 0
    if p.valu:
        vw = {r for r in p.W if r[0] in 'va'}; sw = {r for r in p.W if r[0] in ('s', 'vcc')}
        if vw & c.R:
            if c.dpp or c.perml: n = max(n, 2)
            if c.rdl: n = max(n, 1)
            if c.mfma: n = max(n, 2)
            if p.trans and (c.valu or c.mfma): n = max(n, 1)
            if 'sdwa' in p.mn and c.valu: n = max(n, 1)
            if p.mn.startswith('v_dot') and c.mn != p.mn: n = max(n, 3)
        if sw & c.R:
            if c.valu: n = max(n, 4 if c.rdl else 2)
            if c.vmem: n = max(n, 5)
        if ('exec', 0) in p.W:
            if c.dpp: n = max(n, 5)
            if c.rdl or c.perml or c.mfma: n = max(n, 4)
    if p.mfma:
        big = {4: 8, 8: 12}[p.passes]
        if c.mfma:
            if p.D & c.A: n = max(n, big)
            if p.D & c.C and not (p.D == c.C and p.passes == c.passes): n = max(n, big - 2)
            if p.D & c.D and not (p.D == c.C): n = max(n, big)
        else:
            if p.D & (c.R | c.W): n = max(n, big)
            if c.valu and (p.C & c.W): n = max(n, {4: 3, 8: 7}[p.passes])
    if p.widestore and (c.valu or c.vmem or c.ds or c.mfma):
        data = regs(p.ops[0]) if p.mn.startswith('buffer') else regs(p.ops[1])
        if data & c.W: n = max(n, 2)
    if p.salu and ('m0', 0) in p.W and (c.vmem and getattr(c, 'ldsdma', False)): n = max(n, 1)
    return n
def fix(lines):
    out = []; hist = []
    for ln in lines:
        t = ln.split(';')[0].strip()
        if not t or t.startswith('.') :
            out.append(ln); continue
        if t.endswith(':'):
            out.append(ln); continue
        c = Ins(ln)
        dist = 0; pad = 0
        for p in reversed(hist[-24:]):
            nreq = need(p, c)
            if nreq > dist: pad = max(pad, nreq - dist)
            dist += p.states
            if dist > 20: break
        if pad:
            nop = Ins('s_nop %d' % (pad - 1)); out.append('  s_nop %d' % (pad - 1)); hist.append(nop)
        out.append(ln); hist.append(c)
    return out
class K:
    def __init__(s): s.L = []
    def __call__(s, fmt, *a):
        for ln in (fmt % a if a else fmt).split('\n'):
            ln = ln.strip()
            if ln: s.L.append(ln if ln.endswith(':') else '  ' + ln)
def vr(a, n=1): return 'v%d' % a if n == 1 else 'v[%d:%d]' % (a, a + n - 1)
def ar(a, n=1): return 'a%d' % a if n == 1 else 'a[%d:%d]' % (a, a + n - 1)
def sr(a, n=1): return 's%d' % a if n == 1 else 's[%d:%d]' % (a, a + n - 1)

import os
STAMP = int(os.environ.get('STAMP', '0'))
def stamp(k, kid, idx, wsreg=4, vt=(250, 251, 252), ins='s_memrealtime'):
    if not STAMP: return
    a, b, c = vt
    k(ins + ' s[60:61]\ns_lshl_b32 s62, s2, 11\ns_add_u32 s62, s62, %d\nv_lshrrev_b32 v%d, 6, v0\nv_lshl_add_u32 v%d, v%d, 7, s62', 0x1340000 + kid * 256 * 2048 + idx * 8, c, c, c)
    k('s_waitcnt lgkmcnt(0)\nv_mov_b32 v%d, s60\nv_mov_b32 v%d, s61\nglobal_store_dwordx2 v%d, v[%d:%d], s[%d:%d]', a, b, c, a, b, wsreg, wsreg + 1)
EXP = os.environ.get('EXP', '')
```

```python
from asmlib import *
from gen1 import *
from gen2 import cmul, cexp, unpack, round2, fhex, HB, KB, TB, UVB
FLG1, FLG2, FLG3 = 0x1330000, 0x1331000, 0x1332000
WSZ = 0x1334000
CNT = 163824
SC = ' sc1'
ST_V = (184, 185, 186)
def st(k, idx):
    stamp(k, 0, idx, vt=ST_V)
    if idx in (0, 15): stamp(k, 1, 1 if idx else 0, vt=ST_V, ins='s_memtime')
def get_tag(k, lab):
    k('v_mov_b32 v176, 0\ns_mov_b32 s42, 0\n%s:\nglobal_load_dwordx2 v[178:179], v176, s[6:7] sc1\ns_waitcnt vmcnt(0)', lab)
    k('v_readfirstlane_b32 s40, v178\nv_readfirstlane_b32 s41, v179\ns_add_u32 s42, s42, 1\ns_cmp_gt_u32 s42, 0x40000\ns_cbranch_scc1 %s_D', lab)
    k('s_cmp_lg_u32 s40, 0\ns_cbranch_scc1 %s_D\ns_sleep 4\ns_branch %s\n%s_D:', lab, lab, lab)
def signal(k, flagoff_sreg):
    k('v_mov_b32 v176, s%d\nv_mov_b32 v178, s40\nv_mov_b32 v179, s41\ns_mov_b64 s[44:45], exec\ns_mov_b64 exec, 1', flagoff_sreg)
    k('global_store_dwordx2 v176, v[178:179], s[4:5] sc1\ns_mov_b64 exec, s[44:45]')
def poll(k, lab, base_v, nld, nl, step=1024):
    k('s_mov_b32 s42, 0\ns_mov_b64 s[44:45], exec\ns_mov_b64 exec, %s\n%s:', '-1' if nl == 64 else hex((1 << nl) - 1) if nl <= 32 else 's[46:47]', lab)
    for i in range(nld): k('global_load_dwordx4 %s, v%d, s[4:5] offset:%d sc1', vr(176 + 4 * i, 4), base_v, step * i)
    k('s_waitcnt vmcnt(0)')
    for i in range(nld):
        for j in range(4): k('v_xor_b32 v%d, s%d, v%d', 176 + 4 * i + j, 40 + (j & 1), 176 + 4 * i + j)
    for i in range(1, 4 * nld): k('v_or_b32 v176, v176, v%d', 176 + i)
    k('v_cmp_ne_u32 vcc, 0, v176\ns_add_u32 s42, s42, 1\ns_cmp_gt_u32 s42, 0x40000\ns_cbranch_scc1 %s_D', lab)
    k('s_nop 2\ns_cbranch_vccz %s_D\ns_sleep 6\ns_branch %s\n%s_D:\ns_mov_b64 exec, s[44:45]', lab, lab, lab)
def roles(k):
    k('s_cmp_lt_u32 s3, 4\ns_cbranch_scc1 R_END\ns_cmp_ge_u32 s2, 232\ns_cbranch_scc1 R_END')
    k('v_lshrrev_b32 v2, 6, v0\nv_subrev_u32 v2, 4, v2')
    k('s_cmp_ge_u32 s2, 176\ns_cbranch_scc1 R_W2\ns_cmp_ge_u32 s2, 112\ns_cbranch_scc1 R_S\ns_cmp_ge_u32 s2, 64\ns_cbranch_scc1 R_MOD')
    ldptr(k, 24, 'u'); k('s_waitcnt lgkmcnt(0)')
    k('v_and_b32 v7, 3, v1\nv_lshrrev_b32 v8, 2, v1\nv_lshl_add_u32 v8, v2, 4, v8\ns_lshl_b32 s26, s2, 5\nv_lshl_add_u32 v3, v7, 3, s26')
    k('v_lshlrev_b32 v4, 10, v3\nv_lshl_add_u32 v4, v8, 4, v4\nv_add_u32 v5, 0x1000, v4')
    for i in range(8): k('global_load_dwordx4 %s, v%d, s[24:25] offset:%d', vr(16 + 4 * i, 4), 4 if i < 4 else 5, (i & 3) * 1024)
    k('v_lshlrev_b32 v6, 15, v8\nv_lshl_add_u32 v6, v3, 1, v6\ns_waitcnt vmcnt(0)')
    transpose8(k, 16, 48, 20, 21)
    for j in range(8): k('s_mov_b32 s26, %d\nbuffer_store_dwordx4 %s, v6, s[36:39], s26 offen sc1', XT + j * 4096, vr(48 + 4 * j, 4))
    k('s_branch R_SIG')
    k('R_S:')
    ldptr(k, 24, 'u'); k('s_waitcnt lgkmcnt(0)')
    k('s_sub_u32 s26, s2, 112\ns_lshl_b32 s26, s26, 5\nv_lshl_add_u32 v3, v2, 3, s26\nv_lshlrev_b32 v4, 10, v3\nv_lshl_add_u32 v4, v1, 4, v4\nv_add_u32 v5, 0x1000, v4')
    for i in range(8): k('global_load_dwordx4 %s, v%d, s[24:25] offset:%d', vr(16 + 4 * i, 4), 4 if i < 4 else 5, (i & 3) * 1024)
    for i in range(16): k('v_mov_b32 v%d, 0', 80 + i)
    for i in range(8):
        k('s_waitcnt vmcnt(%d)', 7 - i)
        for a in range(4):
            k('v_dot2_f32_bf16 v%d, v%d, s22, v%d', 80 + i, 16 + 4 * i + a, 80 + i)
            k('v_dot2_f32_bf16 v%d, v%d, v%d, v%d', 88 + i, 16 + 4 * i + a, 16 + 4 * i + a, 88 + i)
    for b in (80, 88):
        for i in range(4): k('v_permlane32_swap_b32 v%d, v%d', b + i, b + i + 4)
        for i in range(4): k('v_add_f32 v%d, v%d, v%d', b + i, b + i, b + i + 4)
        for i in range(2): k('v_permlane16_swap_b32 v%d, v%d', b + i, b + i + 2)
        for i in range(2): k('v_add_f32 v%d, v%d, v%d', b + i, b + i, b + i + 2)
    rowsum16(k, [80, 81, 88, 89])
    lnstats(k, 80, 88, 96, 97, 100); lnstats(k, 81, 89, 98, 99, 101)
    k('v_lshrrev_b32 v7, 4, v1\nv_lshl_add_u32 v7, v7, 1, v3\nv_lshlrev_b32 v7, 3, v7\ns_mov_b32 s26, 0x%x', STATS)
    k('v_and_b32 v8, 15, v1\nv_cmp_eq_u32 vcc, 0, v8\ns_and_saveexec_b64 s[44:45], vcc')
    k('buffer_store_dwordx4 v[96:99], v7, s[36:39], s26 offen sc1\ns_mov_b64 exec, s[44:45]\ns_branch R_SIG')
    k('R_MOD:')
    ldptr(k, 24, 'wmod'); ldptr(k, 26, 'c'); k('s_waitcnt lgkmcnt(0)')
    k('s_sub_u32 s28, s2, 64\ns_lshl_b32 s28, s28, 2\ns_add_u32 s28, s28, s3\ns_sub_u32 s28, s28, 4')
    k('v_lshrrev_b32 v3, 1, v1\nv_and_b32 v4, 1, v1\nv_lshlrev_b32 v5, 5, v3')
    k('global_load_dwordx4 v[8:11], v5, s[26:27]\nglobal_load_dwordx4 v[12:15], v5, s[26:27] offset:16')
    k('s_mov_b32 s29, %d\nv_mul_lo_u32 v5, v3, s29\nv_lshl_add_u32 v5, v4, 4, v5\ns_lshl_b32 s29, s28, 5\nv_add_u32 v5, s29, v5', 16 * 6144)
    for i in range(16): k('global_load_dwordx4 %s, v5, s[24:25]\nv_add_u32 v5, 6144, v5', vr(32 + 4 * i, 4))
    k('s_waitcnt vmcnt(16)')
    for i in range(8): unpack(k, 16 + 2 * i, 8 + i)
    for i in range(16):
        k('v_mul_f32 v100, 0xbfb8aa3b, v%d\nv_exp_f32 v100, v100\nv_add_f32 v100, 1.0, v100\nv_rcp_f32 v100, v100\nv_mul_f32 v%d, v%d, v100', 16 + i, 16 + i, 16 + i)
        bfround(k, 16 + i, 16 + i)
    for j in range(8): k('v_mov_b32 v%d, 0', 104 + j)
    for i in range(16):
        k('s_waitcnt vmcnt(%d)', 15 - i)
        for a in range(4):
            unpack(k, 100, 32 + 4 * i + a)
            k('v_fmac_f32 v%d, v100, v%d\nv_fmac_f32 v%d, v101, v%d', 104 + 2 * a, 16 + i, 105 + 2 * a, 16 + i)
    for i in range(4): k('v_permlane32_swap_b32 v%d, v%d', 104 + i, 108 + i)
    for i in range(4): k('v_add_f32 v%d, v%d, v%d', 104 + i, 104 + i, 108 + i)
    for i in range(2): k('v_permlane16_swap_b32 v%d, v%d', 104 + i, 106 + i)
    for i in range(2): k('v_add_f32 v%d, v%d, v%d', 104 + i, 104 + i, 106 + i)
    for mode in ('row_ror:8', 'row_ror:4', 'row_ror:2'):
        for i in range(2): k('v_add_f32_dpp v%d, v%d, v%d %s row_mask:0xf bank_mask:0xf', 104 + i, 104 + i, 104 + i, mode)
    bfround(k, 104, 104); bfround(k, 105, 105)
    k('v_lshrrev_b32 v6, 4, v1\nv_lshlrev_b32 v6, 3, v6\nv_lshl_add_u32 v6, v4, 5, v6\ns_lshl_b32 s29, s28, 6\ns_add_u32 s29, s29, 0x%x', MOD)
    k('v_and_b32 v8, 14, v1\nv_cmp_eq_u32 vcc, 0, v8\ns_and_saveexec_b64 s[44:45], vcc')
    k('buffer_store_dwordx2 v[104:105], v6, s[36:39], s29 offen sc1\ns_mov_b64 exec, s[44:45]')
    k('R_SIG:')
    get_tag(k, 'R_TAG')
    k('v_mov_b32 v8, %d\nv_mov_b32 v9, 1\ns_mov_b64 s[44:45], exec\ns_mov_b64 exec, 1\nds_add_rtn_u32 v9, v8, v9\ns_waitcnt lgkmcnt(0)\ns_mov_b64 exec, s[44:45]', CNT)
    k('v_readfirstlane_b32 s26, v9\ns_cmp_lg_u32 s26, 3\ns_cbranch_scc1 R_END')
    k('s_lshl_b32 s26, s2, 3\ns_add_u32 s26, s26, 0x%x', FLG1); signal(k, 26)
    k('s_branch R_END')
    k('R_W2:')
    ldptr(k, 24, 'w2'); k('s_waitcnt lgkmcnt(0)')
    k('s_sub_u32 s28, s2, 176\ns_mul_i32 s29, s28, 0x5556\ns_lshr_b32 s29, s29, 16\ns_lshl_b32 s30, s28, 1\ns_add_u32 s29, s29, s30\ns_mov_b32 s30, 1')
    k('s_cmp_lt_u32 s28, 48\ns_cbranch_scc1 R_W2a\ns_sub_u32 s29, s28, 48\ns_mul_i32 s29, s29, 14\ns_add_u32 s29, s29, 6\ns_mov_b32 s30, 7\nR_W2a:')
    k('s_lshl_b32 s29, s29, 14\ns_lshl_b32 s30, s30, 14')
    k('v_and_b32 v4, 1, v2\nv_lshlrev_b32 v4, 13, v4\nv_lshrrev_b32 v5, 1, v2\nv_lshl_add_u32 v4, v5, 10, v4\nv_lshl_add_u32 v4, v1, 4, v4\nv_add_u32 v4, s29, v4')
    k('v_add_u32 v5, 0x1000, v4\nv_add_u32 v6, s30, v4\nv_add_u32 v7, s30, v5')
    for i in range(8): k('global_load_dwordx4 %s, v%d, s[24:25] offset:%d', vr(16 + 4 * i, 4), 4 + (i >> 1), (i & 1) * 2048)
    k('v_mul_u32_u24 v8, 8320, v2\nv_lshrrev_b32 v9, 5, v1\nv_mul_u32_u24 v9, 4160, v9\nv_add_u32 v9, v9, v8')
    k('v_bfe_u32 v10, v1, 3, 2\nv_lshl_add_u32 v9, v10, 10, v9\nv_and_b32 v10, 1, v1\nv_lshl_add_u32 v9, v10, 9, v9\nv_bfe_u32 v10, v1, 1, 2\nv_lshl_add_u32 v9, v10, 6, v9')
    k('v_lshl_add_u32 v8, v1, 4, v8')
    k('v_lshrrev_b32 v6, 4, v1\nv_lshlrev_b32 v6, 10, v6\nv_and_b32 v7, 15, v1\nv_lshl_add_u32 v6, v7, 4, v6\nv_lshl_add_u32 v6, v2, 8, v6')
    k('s_lshl_b32 s29, s28, 12\ns_add_u32 s29, s29, 0x%x\ns_waitcnt vmcnt(0)', W2F)
    transpose8(k, 16, 48, 20, 21)
    for j in range(8): k('ds_write_b128 v9, %s offset:%d', vr(48 + 4 * j, 4), (j >> 2) * 256 + (j & 3) * 16)
    k('s_waitcnt lgkmcnt(0)')
    for j in range(8): k('ds_read_b128 %s, v8 offset:%d', vr(16 + 4 * j, 4), (j >> 2) * 4160 + (j & 3) * 1024)
    for j in range(8): k('s_waitcnt lgkmcnt(%d)\nbuffer_store_dwordx4 %s, v6, s[36:39], s29 offen sc1\ns_add_u32 s29, s29, %d', 7 - j, vr(16 + 4 * j, 4), 56 * 4096)
    k('R_END:')
```

```python
from f1 import *
SPB = 154624
def prologue(k):
    k('s_cmp_ge_u32 s2, 256\ns_cbranch_scc1 F_END')
    k('s_load_dwordx16 s[8:23], s[0:1], 8\ns_load_dwordx4 s[4:7], s[0:1], 128\ns_load_dwordx4 s[24:27], s[0:1], 80')
    k('v_lshrrev_b32 v2, 6, v0\nv_and_b32 v1, 63, v0\ns_nop 0\nv_readfirstlane_b32 s3, v2')
    k('v_and_b32 v3, 255, v0\ns_lshl_b32 s28, s2, 9\nv_lshl_add_u32 v4, v3, 1, s28')
    k('s_lshl_b32 s28, s2, 1\nv_lshrrev_b32 v5, 7, v3\nv_add_u32 v5, s28, v5\nv_lshlrev_b32 v5, 1, v5')
    k('v_mov_b32 v6, %d\nv_mov_b32 v7, 0\nds_write_b32 v6, v7', CNT)
    k('s_waitcnt lgkmcnt(0)')
    k('s_mov_b32 s28, s4\ns_mov_b32 s29, s5\ns_mov_b32 s4, s6\ns_mov_b32 s5, s7\ns_mov_b32 s6, s28\ns_mov_b32 s7, s29')
    mksrd(k, 36, WSZ, 0, 4)
    st(k, 0)
    k('s_or_b32 s28, s2, s3\ns_cmp_lg_u32 s28, 0\ns_cbranch_scc1 P_NT')
    k('s_memrealtime s[40:41]\ns_waitcnt lgkmcnt(0)\ns_or_b32 s40, s40, 1\nv_mov_b32 v176, 0\nv_mov_b32 v178, s40\nv_mov_b32 v179, s41')
    k('s_mov_b64 exec, 1\nglobal_store_dwordx2 v176, v[178:179], s[6:7] sc1\ns_mov_b64 exec, -1\nP_NT:')
    for i in range(6): k('global_load_ushort v%d, v4, %s', 120 + i, sr(8 + 2 * i, 2))
    k('global_load_ushort v126, v5, s[20:21]')
    k('s_lshr_b32 s28, s3, 2\ns_lshl_b32 s29, s2, 1\ns_add_u32 s29, s29, s28\ns_lshl_b32 s29, s29, 1\nv_mov_b32 v5, s29\nglobal_load_ushort v127, v5, s[22:23]')
    k('s_min_u32 s30, s2, 223\ns_cmp_ge_u32 s30, 112\ns_cselect_b32 s32, 1, 0\ns_cselect_b32 s24, s26, s24\ns_cselect_b32 s25, s27, s25\ns_mul_i32 s33, s32, 112\ns_sub_u32 s33, s30, s33')
    k('v_lshrrev_b32 v6, 5, v0\nv_bfe_u32 v7, v1, 3, 2\nv_lshlrev_b32 v8, 5, v6\nv_lshl_add_u32 v8, v7, 2, v8')
    k('v_and_b32 v9, 7, v1\nv_mul_u32_u24 v10, 3584, v8\nv_lshl_add_u32 v10, v9, 2, v10\ns_lshl_b32 s28, s33, 5\nv_add_u32 v10, s28, v10')
    for i in range(8): k('v_add_u32 v11, %d, v10\nglobal_load_dword v%d, v11, s[24:25]', ((i & 3) + 16 * (i >> 2)) * 3584, 128 + i)
    k('s_mov_b32 s20, 0x05040100\ns_mov_b32 s21, 0x07060302\ns_mov_b32 s22, 0x3f803f80')
    k('s_barrier')
def kgen(k):
    k('v_and_b32 v3, 255, v0\ns_lshr_b32 s25, s3, 2')
    k('s_lshl_b32 s27, s25, 11\ns_add_u32 s27, s27, %d', TB)
    for i in range(8):
        k('v_lshl_add_u32 v52, v3, 3, %d\nv_cvt_f32_u32 v52, v52', i)
        bfround(k, 52, 52)
        k('v_cvt_u32_f32 v52, v52\nv_bfe_u32 v53, v52, 4, 5\nv_and_b32 v54, 15, v52\nv_lshrrev_b32 v55, 9, v52')
        k('v_lshrrev_b32 v56, 2, v54\nv_lshl_add_u32 v56, v55, 2, v56\nv_add_u32 v56, 12, v56')
        k('v_cmp_eq_u32 vcc, 0, v55\nv_cndmask_b32 v54, v56, v54, vcc')
        k('v_lshl_add_u32 v53, v53, 6, s27\nv_lshl_add_u32 v%d, v54, 1, v53', 44 + i)
    k('v_mov_b32 v52, 0\nv_mov_b32 v53, 0\nv_mov_b32 v54, 0\nv_mov_b32 v55, 0')
    k('s_cmp_ge_u32 s3, 3\ns_cbranch_scc1 K2_NZ\ns_cmp_eq_u32 s3, 2\ns_cbranch_scc1 K2_ZH')
    k('s_mul_i32 s27, s3, 5120\ns_add_u32 s27, s27, %d\nv_lshrrev_b32 v56, 4, v1\nv_mul_u32_u24 v56, 1280, v56\nv_and_b32 v57, 15, v1\nv_lshl_add_u32 v56, v57, 4, v56\nv_add_u32 v56, s27, v56', KB)
    k('ds_write_b128 v56, v[52:55]\ns_branch K2_NZ')
    k('K2_ZH:\nv_lshrrev_b32 v56, 2, v1\nv_mul_u32_u24 v56, 4160, v56\nv_and_b32 v57, 3, v1\nv_lshl_add_u32 v56, v57, 4, v56')
    k('ds_write_b128 v56, v[52:55] offset:%d\nK2_NZ:', HB + 4096)
    k('v_lshrrev_b32 v56, 7, v3\nv_mul_u32_u24 v56, 33792, v56\nv_and_b32 v57, 127, v3\nv_lshl_add_u32 v56, v57, 2, v56\nv_add_u32 v56, %d, v56', UVB)
    k('s_waitcnt vmcnt(8)')
    for i in range(7): k('v_lshlrev_b32 v%d, 16, v%d', 10 + i, 120 + i)
    k('v_mul_f32 v16, 0x3fb8aa3b, v16\nv_exp_f32 v16, v16'); bfround(k, 16, 16)
    k('v_mul_f32 v10, v10, v16\nv_mul_f32 v11, v11, v16\nv_mul_f32 v10, 0x3fb8aa3b, v10\nv_mul_f32 v11, 0.15915494, v11')
    k('s_cmp_ge_u32 s3, 4\ns_cbranch_scc1 K2_V')
    k('v_mul_f32 v12, v12, v16\nv_mul_f32 v13, v13, v16')
    cmul(k, 60, 14, 12, 58); cexp(k, 64, 10, 11, 16.0, 58); cexp(k, 66, 10, 11, 256.0, 58); cmul(k, 68, 60, 66, 58)
    A = [60, 62]; B = [68, 70]
    for i in range(16):
        a, b = A[i & 1], B[i & 1]
        k('v_cvt_pk_bf16_f32 v72, v%d, v%d\nv_cvt_pk_bf16_f32 v73, v%d, v%d', a, a + 1, b, b + 1)
        if i < 15: cmul(k, A[1 - (i & 1)], a, 64, 58); cmul(k, B[1 - (i & 1)], b, 64, 74)
        k('ds_write_b32 v56, v72 offset:%d\nds_write_b32 v56, v73 offset:%d', i * 528, (i + 16) * 528)
    k('s_branch K2_H\nK2_V:')
    VO = 16896
    def wv(col, r): k('v_cvt_pk_bf16_f32 v72, v%d, -v%d\nds_write_b32 v56, v72 offset:%d', r, r + 1, VO + col * 528)
    k('v_mov_b32 v72, 0x3f80\nds_write_b32 v56, v72 offset:%d', VO)
    cexp(k, 82, 10, 11, 1.0, 58); cexp(k, 96, 10, 11, 8.0, 58); cexp(k, 76, 10, 11, 512.0, 58); cexp(k, 78, 10, 11, 1024.0, 58)
    wv(1, 82); wv(8, 96)
    for j in range(1, 8):
        if j < 7: cmul(k, 80 + 2 * (j + 1), 80 + 2 * j, 82, 58)
        cmul(k, 80 + 2 * (j + 8), 80 + 2 * (j + 7), 82, 74)
        if j < 7: wv(j + 1, 80 + 2 * (j + 1))
        wv(j + 8, 80 + 2 * (j + 8))
    wv(16, 76); wv(20, 78)
    for i, j in enumerate((4, 8, 12)): cmul(k, 60, 76, 80 + 2 * j, 58); wv(17 + i, 60)
    cmul(k, 60, 78, 96, 58); wv(22, 60); cmul(k, 62, 76, 78, 58); wv(24, 62)
    cmul(k, 60, 62, 96, 58); wv(26, 60); cmul(k, 60, 78, 78, 58); wv(28, 60)
    k('K2_H:')
    k('v_and_b32 v52, 15, v1\nv_lshrrev_b32 v53, 4, v1')
    k('v_mul_u32_u24 v54, 528, v52\nv_and_b32 v55, 1, v53\nv_lshl_add_u32 v54, v55, 8, v54\nv_lshrrev_b32 v55, 1, v53\nv_lshl_add_u32 v54, v55, 7, v54')
    k('s_mul_i32 s27, s25, 33792\ns_add_u32 s27, s27, %d\ns_bfe_u32 s28, s3, 0x10001\ns_and_b32 s29, s3, 1', UVB)
    k('s_mul_i32 s30, s28, 8448\ns_add_u32 s30, s30, s27\nv_add_u32 v55, s30, v54')
    k('s_mul_i32 s30, s29, 8448\ns_add_u32 s30, s30, s27\ns_add_u32 s30, s30, 16896\nv_add_u32 v54, s30, v54')
    k('s_waitcnt lgkmcnt(0)\ns_barrier')
    st(k, 1)
    for ks in range(8):
        k('ds_read_b128 %s, v54 offset:%d\nds_read_b128 %s, v55 offset:%d', vr(56 + 8 * ks, 4), 16 * ks, vr(60 + 8 * ks, 4), 16 * ks)
        if ks == 3: k('s_waitcnt lgkmcnt(0)')
    for ks in range(8):
        if ks == 4: k('s_waitcnt lgkmcnt(0)')
        k('v_mfma_f32_16x16x32_bf16 v[24:27], %s, %s, %s', vr(56 + 8 * ks, 4), vr(60 + 8 * ks, 4), 'v[24:27]' if ks else '0')
    k('s_lshl_b32 s27, s25, 11\ns_lshl_b32 s30, s28, 10\ns_add_u32 s27, s27, s30\ns_lshl_b32 s30, s29, 5\ns_add_u32 s27, s27, s30\ns_add_u32 s27, s27, %d', TB)
    k('v_lshl_add_u32 v54, v52, 6, s27\nv_lshl_add_u32 v54, v53, 3, v54')
    k('v_cvt_pk_bf16_f32 v28, v24, v25\nv_cvt_pk_bf16_f32 v29, v26, v27\nds_write_b64 v54, v[28:29]')
    k('s_mul_i32 s27, s25, 5120\ns_add_u32 s27, s27, %d', KB + 256)
    k('v_and_b32 v54, 3, v3\nv_mul_u32_u24 v54, 1280, v54\nv_lshrrev_b32 v55, 2, v3\nv_lshl_add_u32 v54, v55, 4, v54\nv_add_u32 v54, s27, v54')
    k('s_waitcnt lgkmcnt(0)\ns_barrier')
    for i in range(8): k('ds_read_u16 v%d, v%d', 28 + i, 44 + i)
    k('s_and_b32 s28, s3, 3')
    k('v_sub_u32 v42, 7, v52\nv_and_b32 v42, 7, v42\nv_mul_u32_u24 v42, 4160, v42')
    k('v_sub_u32 v43, 2047, v52\nv_lshrrev_b32 v43, 3, v43\nv_add_u32 v43, v43, v53\nv_lshl_add_u32 v42, v43, 4, v42')
    k('s_mul_i32 s27, s25, 33280\ns_lshl_b32 s30, s28, 8\ns_sub_u32 s27, s27, s30\ns_add_u32 s27, s27, %d\nv_add_u32 v42, s27, v42', (HB - 192 - 3072 - 32) & 0xffffffff)
    k('v_mul_u32_u24 v43, 1280, v53\nv_lshl_add_u32 v43, v52, 4, v43')
    k('s_mul_i32 s27, s25, 5120\ns_lshl_b32 s30, s28, 6\ns_sub_u32 s27, s27, s30\ns_add_u32 s27, s27, %d\nv_add_u32 v43, s27, v43', KB + 256 - 48)
    k('s_lshl_b32 s26, s2, 1\ns_add_u32 s26, s26, s25')
    k('s_lshl_b32 s27, s26, 12\nv_lshl_add_u32 v6, v3, 4, s27\nv_lshlrev_b32 v7, 6, v3\nv_add_u32 v7, 0x%x, v7', STATS)
    k('s_lshl_b32 s27, s26, 2\ns_add_u32 s27, s27, 0x%x\nv_mov_b32 v8, s27', MOD + 2048)
    k('v_lshrrev_b32 v9, 5, v0\nv_bfe_u32 v10, v1, 3, 2\nv_lshlrev_b32 v11, 7, v9\nv_lshl_add_u32 v11, v10, 4, v11\nv_add_u32 v11, 0x%x, v11', MOD + 3 * 2048)
    k('s_mul_i32 s27, s25, 33280\ns_add_u32 s27, s27, %d\nv_lshlrev_b32 v41, 4, v3\nv_sub_u32 v41, s27, v41', HB + 4080)
    k('s_waitcnt lgkmcnt(0)')
    for a in range(4): k('v_lshl_or_b32 v%d, v%d, 16, v%d', 24 + a, 29 + 2 * a, 28 + 2 * a)
    k('ds_write_b128 v54, v[24:27]')
def sync1(k):
    st(k, 2)
    k('s_cmp_lg_u32 s3, 0\ns_cbranch_scc1 S1_W')
    get_tag(k, 'S1_TAG')
    k('v_lshlrev_b32 v187, 4, v1\nv_add_u32 v187, 0x%x, v187\ns_mov_b32 s46, -1\ns_mov_b32 s47, 0xfff', FLG1)
    poll(k, 'S1_P', 187, 2, 44, 704)
    k('S1_W:\ns_barrier')
    st(k, 3)
def conv(k):
    k('global_load_dwordx4 v[20:23], v6, s[4:5]')
    for i in range(4): k('global_load_dwordx4 %s, v7, s[4:5] offset:%d', vr(24 + 4 * i, 4), 16 * i)
    k('global_load_dword v17, v8, s[4:5] offset:-2048\nglobal_load_dword v18, v8, s[4:5]\nglobal_load_dword v19, v8, s[4:5] offset:2048')
    k('global_load_dwordx4 v[136:139], v11, s[4:5]\nglobal_load_dwordx4 v[140:143], v11, s[4:5] offset:64')
    k('global_load_dwordx4 v[144:147], v11, s[4:5] offset:2048\nglobal_load_dwordx4 v[148:151], v11, s[4:5] offset:2112')
    k('s_mul_i32 s27, s33, 0x2493\ns_lshr_b32 s27, s27, 16\ns_mul_i32 s28, s27, 7\ns_sub_u32 s28, s33, s28')
    k('s_mul_i32 s27, s27, 224\ns_mul_i32 s29, s32, 7\ns_add_u32 s27, s27, s29\ns_add_u32 s27, s27, s28\ns_lshl_b32 s27, s27, 10\ns_add_u32 s27, s27, 0x%x', WP)
    k('v_mul_u32_u24 v12, 14336, v9\nv_lshl_add_u32 v12, v10, 8, v12\nv_and_b32 v13, 7, v1\nv_lshl_add_u32 v12, v13, 4, v12\nv_add_u32 v12, s27, v12')
    k('v_lshlrev_b32 v40, 16, v127\ns_waitcnt vmcnt(4)')
    k('v_add_f32 v18, 1.0, v18'); bfround(k, 18, 18)
    for a in range(4):
        h = 60 + 2 * a
        unpack(k, h, 20 + a)
        k('v_sub_f32 v%d, v%d, v%d\nv_sub_f32 v%d, v%d, v%d', h, h, 24 + 4 * a, h + 1, h + 1, 26 + 4 * a); round2(k, h, 58)
        k('v_mul_f32 v%d, v%d, v%d\nv_mul_f32 v%d, v%d, v%d', h, h, 25 + 4 * a, h + 1, h + 1, 27 + 4 * a); round2(k, h, 58)
        k('v_mul_f32 v%d, v%d, v18\nv_mul_f32 v%d, v%d, v18', h, h, h + 1, h + 1); round2(k, h, 58)
        k('v_add_f32 v%d, v%d, v17\nv_add_f32 v%d, v%d, v17', h, h, h + 1, h + 1)
        k('v_cvt_pk_bf16_f32 v%d, v%d, v%d', 71 - a, h + 1, h); round2(k, h, 58)
    k('ds_write_b128 v41, v[68:71]\ns_waitcnt lgkmcnt(0)\ns_barrier')
    k('ds_read_b128 v[72:75], v41 offset:16')
    k('s_waitcnt vmcnt(0)')
    for i in range(8): k('v_add_f32 v%d, 1.0, v%d', 144 + i, 144 + i); bfround(k, 144 + i, 144 + i)
    k('s_waitcnt lgkmcnt(0)')
    for i in range(6): k('v_mov_b32 v%d, v%d', 76 + i, 69 + i)
    for i in range(6): k('v_alignbit_b32 v%d, v%d, v%d, 16\nv_alignbit_b32 v%d, v%d, v%d, 16', 82 + i, 69 + i, 68 + i, 88 + i, 70 + i, 69 + i)
    for s_, r in ((1, 82), (2, 76), (3, 88), (4, 70), (5, 84), (6, 78), (7, 90)): k('ds_write_b128 v41, %s offset:%d', vr(r, 4), 4160 * s_)
    for i in range(4): k('v_mov_b32 v%d, 0', 160 + i)
    for a in range(4):
        unpack(k, 112, 128 + 2 * a); unpack(k, 114, 129 + 2 * a)
        k('v_fmac_f32 v162, v112, v%d\nv_fmac_f32 v163, v113, v%d\nv_fmac_f32 v162, v114, v%d\nv_fmac_f32 v163, v115, v%d', 136 + 2 * a, 136 + 2 * a, 137 + 2 * a, 137 + 2 * a)
        k('v_mul_f32 v112, v112, v%d\nv_mul_f32 v113, v113, v%d\nv_mul_f32 v114, v114, v%d\nv_mul_f32 v115, v115, v%d', 144 + 2 * a, 144 + 2 * a, 145 + 2 * a, 145 + 2 * a)
        k('v_cvt_pk_bf16_f32 v%d, v112, v114\nv_cvt_pk_bf16_f32 v%d, v113, v115', 152 + a, 156 + a)
    k('s_cmp_ge_u32 s2, 224\ns_cbranch_scc1 C_NW')
    k('global_store_dwordx4 v12, v[152:155], s[4:5] sc1\nglobal_store_dwordx4 v12, v[156:159], s[4:5] offset:128 sc1\nC_NW:')
    for a in range(4): k('v_dot2_f32_bf16 v160, v%d, s22, v160\nv_dot2_f32_bf16 v161, v%d, s22, v161', 152 + a, 156 + a)
    k('s_nop 2\nv_permlane32_swap_b32 v160, v162\nv_permlane32_swap_b32 v161, v163\nv_add_f32 v160, v160, v162\nv_add_f32 v161, v161, v163')
    k('v_permlane16_swap_b32 v160, v161\nv_add_f32 v160, v160, v161')
    k('v_add_f32_dpp v160, v160, v160 row_ror:8 row_mask:0xf bank_mask:0xf')
    k('v_lshrrev_b32 v112, 5, v1\nv_lshlrev_b32 v112, 6, v112\nv_lshl_add_u32 v112, v13, 2, v112\nv_bfe_u32 v113, v1, 4, 1\nv_lshl_add_u32 v112, v113, 5, v112\ns_lshl_b32 s27, s3, 7\ns_add_u32 s27, s27, %d\nv_add_u32 v112, s27, v112', SPB)
    k('ds_write_b32 v112, v160\ns_waitcnt lgkmcnt(0)\ns_barrier')
    st(k, 4)
    ACC = 68; FB = [[100 + 4 * i for i in range(12)], [148, 152, 156, 160, 164, 24, 28, 32, 36, 44, 48, 56]]
    def reads(e):
        f = FB[e & 1]; L = []
        for u in range(4): L.append('ds_read_b128 %s, v43 offset:%d' % (vr(f[u], 4), 256 * u + 16 * (3 - e)))
        for j in range(4):
            for ct in range(2): L.append('ds_read_b128 %s, v42 offset:%d' % (vr(f[4 + 2 * j + ct], 4), 64 * (3 - e) + 1024 * (3 - j) + 32 * (1 - ct)))
        return L
    for l in reads(0): k(l)
    for e in range(4):
        k('s_waitcnt lgkmcnt(0)')
        nxt = reads(e + 1) if e < 3 else []
        f = FB[e & 1]
        for j in range(4):
            for R in range(j, 4):
                for ct in range(2):
                    a = ACC + 8 * R + 4 * ct
                    k('v_mfma_f32_16x16x32_bf16 %s, %s, %s, %s', vr(a, 4), vr(f[4 + 2 * j + ct], 4), vr(f[R - j], 4), '0' if (e == 0 and j == 0) else vr(a, 4))
                    if nxt: k(nxt.pop(0))
    st(k, 5)
    k('s_mul_i32 s27, s3, 9216\ns_add_u32 s27, s27, %d\nv_mul_u32_u24 v54, 144, v52\nv_lshl_add_u32 v54, v53, 4, v54\nv_add_u32 v54, s27, v54', UVB)
    for R in range(4):
        for ct in range(2): k('ds_write_b128 v54, %s offset:%d', vr(ACC + 8 * R + 4 * ct, 4), 2304 * R + 64 * ct)
    k('s_mul_i32 s27, s25, 36864\ns_add_u32 s27, s27, %d\nv_lshrrev_b32 v54, 2, v3\nv_mul_u32_u24 v54, 144, v54\nv_and_b32 v55, 3, v3\nv_lshl_add_u32 v54, v55, 5, v54\nv_add_u32 v54, s27, v54', UVB)
    k('s_cmp_lg_u32 s3, 7\ns_cbranch_scc1 C_NS\ns_cmp_ge_u32 s2, 224\ns_cbranch_scc1 C_NS')
    k('v_and_b32 v112, 31, v1\nv_lshlrev_b32 v113, 2, v112\nv_add_u32 v113, %d, v113', SPB)
    for w in range(8): k('ds_read_b32 v%d, v113 offset:%d', 116 + w, 128 * w)
    k('s_mul_i32 s27, s32, 14336\ns_lshl_b32 s28, s33, 6\ns_add_u32 s27, s27, s28\ns_add_u32 s27, s27, 0x%x', ST)
    k('v_lshrrev_b32 v113, 4, v112\nv_mul_u32_u24 v113, 7168, v113\nv_and_b32 v112, 15, v112\nv_lshl_add_u32 v113, v112, 2, v113\nv_add_u32 v113, s27, v113\ns_waitcnt lgkmcnt(0)')
    for w in range(1, 8): k('v_add_f32 v116, v116, v%d', 116 + w)
    k('global_store_dword v113, v116, s[4:5] sc1\nC_NS:')
    k('s_waitcnt lgkmcnt(0)\ns_barrier')
    for p in range(4): k('ds_read_b128 %s, v54 offset:%d\nds_read_b128 %s, v54 offset:%d', vr(100 + 8 * p, 4), 9216 * p, vr(104 + 8 * p, 4), 9216 * p + 16)
    for a in range(4):
        h = 60 + 2 * a
        k('v_mul_f32 v%d, v%d, v40\nv_mul_f32 v%d, v%d, v40', h, h, h + 1, h + 1); round2(k, h, 58)
    k('s_waitcnt lgkmcnt(0)')
    for i in range(8): k('v_add_f32 v%d, v%d, v%d\nv_add_f32 v%d, v%d, v%d\nv_add_f32 v%d, v%d, v%d', 100 + i, 100 + i, 108 + i, 116 + i, 116 + i, 124 + i, 100 + i, 100 + i, 116 + i)
    for a in range(4):
        y = 100 + 2 * a; h = 60 + 2 * a
        round2(k, y, 58)
        k('v_add_f32 v%d, v%d, v%d\nv_add_f32 v%d, v%d, v%d', y, y, h, y + 1, y + 1, h + 1); round2(k, y, 58)
        k('v_mul_f32 v%d, v%d, v19\nv_mul_f32 v%d, v%d, v19', y, y, y + 1, y + 1); round2(k, y, 58)
        unpack(k, h, 20 + a)
        k('v_add_f32 v%d, v%d, v%d\nv_add_f32 v%d, v%d, v%d\nv_cvt_pk_bf16_f32 v%d, v%d, v%d', y, y, h, y + 1, y + 1, h + 1, 24 + a, y, y + 1)
    k('v_add_u32 v6, 0x%x, v6\nglobal_store_dwordx4 v6, v[24:27], s[4:5] sc1', X1T)
    k('s_waitcnt vmcnt(0)\ns_barrier')
    st(k, 6)
    k('s_cmp_lg_u32 s3, 0\ns_cbranch_scc1 S2_W')
    k('s_lshl_b32 s26, s2, 3\ns_add_u32 s26, s26, 0x%x', FLG2); signal(k, 26)
    k('v_lshlrev_b32 v187, 4, v1\nv_add_u32 v187, 0x%x, v187', FLG2)
    poll(k, 'S2_P', 187, 2, 64)
    k('S2_W:')
```

```python
from asmlib import *
XT, X1T, X1R, WP, W2F, HH = 0x0, 0x200000, 0x400000, 0x600000, 0xA00000, 0xC00000
STATS, MOD, ST = 0x1300000, 0x1310000, 0x1320000
ARG = dict(u=0, Are=8, Aim=16, Bre=24, Bim=32, Cre=40, Cim=48, ldt=56, Dsk=64, w1=80, w3=88, w2=96, c=104, wmod=112, out=120, dbg=128, ws=136)
def ldptr(k, dst, name): k('s_load_dwordx2 %s, s[0:1], %d', sr(dst, 2), ARG[name])
def mksrd(k, dst, size, add=0, src=None):
    if src is not None:
        if add:
            k('s_add_u32 s%d, s%d, 0x%x\ns_addc_u32 s%d, s%d, 0', dst, src, add, dst + 1, src + 1)
        else:
            k('s_mov_b32 s%d, s%d\ns_mov_b32 s%d, s%d', dst, src, dst + 1, src + 1)
    elif add:
        k('s_add_u32 s%d, s%d, 0x%x\ns_addc_u32 s%d, s%d, 0', dst, dst, add, dst + 1, dst + 1)
    k('s_mov_b32 s%d, 0x%x\ns_mov_b32 s%d, 0x00020000', dst + 2, size, dst + 3)
def transpose8(k, src, dst, slo, shi):
    for j in range(8):
        for a in range(4):
            k('v_perm_b32 v%d, v%d, v%d, s%d', dst + 4 * j + a, src + 4 * (2 * a + 1) + (j >> 1), src + 4 * (2 * a) + (j >> 1), shi if j & 1 else slo)
def rowsum16(k, rs):
    for mode in ('quad_perm:[1,0,3,2]', 'quad_perm:[2,3,0,1]', 'row_half_mirror', 'row_mirror'):
        for r in rs: k('v_add_f32_dpp v%d, v%d, v%d %s row_mask:0xf bank_mask:0xf', r, r, r, mode)
def bfround(k, d, s):
    k('v_cvt_pk_bf16_f32 v%d, v%d, v%d\nv_lshlrev_b32 v%d, 16, v%d', d, s, s, d, d)
def lnstats(k, s1, s2, m, r, t):
    k('v_mul_f32 v%d, 0x3b000000, v%d', m, s1)
    k('v_mul_f32 v%d, 0x3b000000, v%d', t, s2)
    k('v_fma_f32 v%d, -v%d, v%d, v%d', t, m, m, t)
    k('v_max_f32 v%d, 0, v%d', t, t)
    bfround(k, t, t); k('v_add_f32 v%d, 0x3727c5ac, v%d', t, t); bfround(k, t, t)
    k('v_sqrt_f32 v%d, v%d', t, t); bfround(k, t, t)
    k('v_rcp_f32 v%d, v%d', r, t); bfround(k, m, m)
def k1():
    k = K()
    k('s_cmp_ge_u32 s2, 168\ns_cbranch_scc1 K1_END')
    ldptr(k, 4, 'ws')
    k('s_mov_b32 s20, 0x05040100\ns_mov_b32 s21, 0x07060302\ns_mov_b32 s22, 0x3f803f80')
    k('v_and_b32 v1, 63, v0\nv_lshrrev_b32 v2, 6, v0')
    k('s_cmp_ge_u32 s2, 112\ns_cbranch_scc1 K1_W2\ns_cmp_ge_u32 s2, 64\ns_cbranch_scc1 K1_MOD')
    ldptr(k, 8, 'u'); k('s_waitcnt lgkmcnt(0)'); stamp(k, 0, 0, vt=(116, 117, 118))
    mksrd(k, 8, 0x200000); mksrd(k, 12, 0x200000, XT, 4); mksrd(k, 16, 0x4000, STATS, 4)
    k('s_lshl_b32 s3, s2, 5')
    k('v_lshl_add_u32 v3, v2, 3, s3')
    k('v_lshlrev_b32 v4, 10, v3\nv_lshl_add_u32 v4, v1, 4, v4')
    k('v_add_u32 v5, 0x1000, v4')
    for i in range(8): k('buffer_load_dwordx4 %s, v%d, s[8:11], 0 offen offset:%d', vr(16 + 4 * i, 4), 4 if i < 4 else 5, (i & 3) * 1024)
    k('v_lshlrev_b32 v6, 15, v1\nv_lshl_add_u32 v6, v3, 1, v6')
    for i in range(16): k('v_mov_b32 v%d, 0', 80 + i)
    for i in range(8):
        k('s_waitcnt vmcnt(%d)', 7 - i)
        for a in range(4):
            k('v_dot2_f32_bf16 v%d, v%d, s22, v%d', 80 + i, 16 + 4 * i + a, 80 + i)
            k('v_dot2_f32_bf16 v%d, v%d, v%d, v%d', 88 + i, 16 + 4 * i + a, 16 + 4 * i + a, 88 + i)
    transpose8(k, 16, 48, 20, 21)
    for j in range(8):
        k('s_mov_b32 s23, %d', j * 4096)
        k('buffer_store_dwordx4 %s, v6, s[12:15], s23 offen', vr(48 + 4 * j, 4))
    for b in (80, 88):
        for i in range(4): k('v_permlane32_swap_b32 v%d, v%d', b + i, b + i + 4)
        for i in range(4): k('v_add_f32 v%d, v%d, v%d', b + i, b + i, b + i + 4)
        for i in range(2): k('v_permlane16_swap_b32 v%d, v%d', b + i, b + i + 2)
        for i in range(2): k('v_add_f32 v%d, v%d, v%d', b + i, b + i, b + i + 2)
    rowsum16(k, [80, 81, 88, 89])
    lnstats(k, 80, 88, 96, 97, 100); lnstats(k, 81, 89, 98, 99, 101)
    k('v_lshrrev_b32 v7, 4, v1\nv_lshl_add_u32 v7, v7, 1, v3\nv_lshlrev_b32 v7, 3, v7')
    k('v_and_b32 v8, 15, v1\nv_cmp_eq_u32 vcc, 0, v8\ns_and_saveexec_b64 s[24:25], vcc')
    k('buffer_store_dwordx4 v[96:99], v7, s[16:19], 0 offen')
    stamp(k, 0, 7, vt=(116, 117, 118)); k('s_endpgm')
    k('K1_MOD:')
    ldptr(k, 8, 'wmod'); ldptr(k, 12, 'c'); k('s_waitcnt lgkmcnt(0)'); stamp(k, 0, 0, vt=(116, 117, 118))
    mksrd(k, 8, 512 * 6144); mksrd(k, 12, 1024); mksrd(k, 16, 3072 * 4, MOD, 4)
    k('s_sub_u32 s3, s2, 64\ns_lshl_b32 s23, s3, 7')
    k('v_lshrrev_b32 v3, 3, v0\nv_and_b32 v4, 7, v0')
    k('v_lshlrev_b32 v5, 5, v3')
    k('buffer_load_dwordx4 v[8:11], v5, s[12:15], 0 offen\nbuffer_load_dwordx4 v[12:15], v5, s[12:15], 0 offen offset:16')
    k('s_mov_b32 s24, %d\nv_mul_lo_u32 v5, v3, s24\nv_lshl_add_u32 v5, v4, 4, v5', 16 * 6144)
    for i in range(16):
        k('s_add_u32 s24, s23, %d', i * 6144)
        k('buffer_load_dwordx4 %s, v5, s[8:11], s24 offen', vr(32 + 4 * i, 4))
    k('s_waitcnt vmcnt(16)')
    for i in range(16):
        k('v_lshlrev_b32 v%d, 16, v%d' % (16 + i, 8 + (i >> 1)) if i % 2 == 0 else 'v_and_b32 v%d, 0xffff0000, v%d' % (16 + i, 8 + (i >> 1)))
    for i in range(16):
        k('v_mul_f32 v100, 0xbfb8aa3b, v%d\nv_exp_f32 v100, v100\nv_add_f32 v100, 1.0, v100\nv_rcp_f32 v100, v100\nv_mul_f32 v%d, v%d, v100', 16 + i, 16 + i, 16 + i)
        bfround(k, 16 + i, 16 + i)
    for j in range(8): k('v_mov_b32 v%d, 0', 104 + j)
    for i in range(16):
        k('s_waitcnt vmcnt(%d)', 15 - i)
        for a in range(4):
            k('v_lshlrev_b32 v100, 16, v%d\nv_and_b32 v101, 0xffff0000, v%d', 32 + 4 * i + a, 32 + 4 * i + a)
            k('v_fmac_f32 v%d, v100, v%d\nv_fmac_f32 v%d, v101, v%d', 104 + 2 * a, 16 + i, 105 + 2 * a, 16 + i)
    for i in range(4): k('v_permlane32_swap_b32 v%d, v%d', 104 + i, 108 + i)
    for i in range(4): k('v_add_f32 v%d, v%d, v%d', 104 + i, 104 + i, 108 + i)
    for i in range(2): k('v_permlane16_swap_b32 v%d, v%d', 104 + i, 106 + i)
    for i in range(2): k('v_add_f32 v%d, v%d, v%d', 104 + i, 104 + i, 106 + i)
    for i in range(2): k('v_add_f32_dpp v%d, v%d, v%d row_ror:8 row_mask:0xf bank_mask:0xf', 104 + i, 104 + i, 104 + i)
    k('v_lshrrev_b32 v6, 4, v1\nv_lshlrev_b32 v6, 3, v6\nv_lshl_add_u32 v6, v4, 5, v6\nv_lshl_add_u32 v6, v2, 8, v6')
    k('ds_write_b64 v6, v[104:105]\ns_waitcnt lgkmcnt(0)\ns_barrier')
    k('v_lshlrev_b32 v6, 2, v1')
    for w in range(4): k('ds_read_b32 v%d, v6 offset:%d', 110 + w, 256 * w)
    k('s_waitcnt lgkmcnt(0)\nv_add_f32 v110, v110, v111\nv_add_f32 v112, v112, v113\nv_add_f32 v110, v110, v112')
    bfround(k, 110, 110)
    k('s_lshl_b32 s23, s3, 8')
    k('v_cmp_gt_u32 vcc, 64, v0\ns_and_saveexec_b64 s[24:25], vcc\ns_cbranch_execz K1_END')
    k('buffer_store_dword v110, v6, s[16:19], s23 offen')
    stamp(k, 0, 7, vt=(116, 117, 118)); k('s_endpgm')
    k('K1_W2:')
    ldptr(k, 8, 'w2'); k('s_waitcnt lgkmcnt(0)'); stamp(k, 0, 0, vt=(116, 117, 118))
    mksrd(k, 8, 1792 * 1024); mksrd(k, 12, 0x1C0000, W2F, 4)
    k('s_sub_u32 s3, s2, 112\ns_lshl_b32 s23, s3, 15')
    k('v_lshlrev_b32 v4, 12, v2\nv_lshl_add_u32 v4, v1, 4, v4\nv_add_u32 v5, 0x4000, v4')
    for i in range(8): k('buffer_load_dwordx4 %s, v%d, s[8:11], s23 offen offset:%d', vr(16 + 4 * i, 4), 4 if i < 4 else 5, (i & 3) * 1024)
    k('v_lshrrev_b32 v6, 3, v1\ns_mov_b32 s24, %d\nv_mul_lo_u32 v6, v6, s24', 56 * 4096)
    k('v_and_b32 v7, 1, v1\nv_lshl_add_u32 v6, v7, 11, v6\nv_bfe_u32 v7, v1, 1, 2\nv_lshl_add_u32 v6, v7, 6, v6\nv_lshl_add_u32 v6, v2, 8, v6')
    k('s_lshl_b32 s23, s3, 12\ns_waitcnt vmcnt(0)')
    transpose8(k, 16, 48, 20, 21)
    for j in range(8): k('buffer_store_dwordx4 %s, v6, s[12:15], s23 offen offset:%d', vr(48 + 4 * j, 4), (j >> 2) * 1024 + (j & 3) * 16)
    stamp(k, 0, 7, vt=(116, 117, 118)); k('K1_END:\ns_endpgm')
    return k.L, dict(vgpr=120, lds=1024, grid=168, block=256)
```

```python
from asmlib import *
from gen1 import *
HB, KB, TB, UVB = 0, 66560, 76800, 80896
K2LDS = UVB + 73728
def cmul(k, d, a, b, t):
    k('v_mul_f32 v%d, v%d, v%d\nv_mul_f32 v%d, v%d, v%d', t, a + 1, b + 1, t + 1, a + 1, b)
    k('v_fma_f32 v%d, v%d, v%d, -v%d\nv_fma_f32 v%d, v%d, v%d, v%d', d, a, b, t, d + 1, a, b + 1, t + 1)
import struct
def fhex(x): return '0x%08x' % struct.unpack('<I', struct.pack('<f', x))[0]
def cexp(k, d, er, pr, L, t):
    k('v_mul_f32 v%d, %s, v%d\nv_mul_f32 v%d, %s, v%d', t, fhex(L), er, t + 1, fhex(L), pr)
    k('v_exp_f32 v%d, v%d\nv_fract_f32 v%d, v%d', t, t, t + 1, t + 1)
    k('v_cos_f32 v%d, v%d\nv_sin_f32 v%d, v%d', d, t + 1, d + 1, t + 1)
    k('v_mul_f32 v%d, v%d, v%d\nv_mul_f32 v%d, v%d, v%d', d, d, t, d + 1, d + 1, t)
def unpack(k, d, s): k('v_lshlrev_b32 v%d, 16, v%d\nv_and_b32 v%d, 0xffff0000, v%d', d, s, d + 1, s)
def round2(k, a, t):
    k('v_cvt_pk_bf16_f32 v%d, v%d, v%d', t, a, a + 1); unpack(k, a, t)
def k2():
    k = K()
    k('s_cmp_ge_u32 s2, 256\ns_cbranch_scc1 K2_END')
    k('s_load_dwordx16 s[8:23], s[0:1], 8')
    ldptr(k, 4, 'ws')
    k('v_lshrrev_b32 v2, 6, v0\nv_and_b32 v1, 63, v0\ns_nop 0\nv_readfirstlane_b32 s3, v2')
    k('s_cmp_ge_u32 s3, 8\ns_cbranch_scc1 K2_SIDE')
    k('s_lshl_b32 s24, s2, 1')
    k('s_lshr_b32 s25, s3, 2\ns_add_u32 s26, s24, s25')
    k('v_and_b32 v3, 255, v0')
    k('s_lshl_b32 s27, s24, 8\nv_lshl_add_u32 v4, v3, 1, s27')
    k('v_lshrrev_b32 v5, 7, v3\nv_add_u32 v5, s24, v5\nv_lshlrev_b32 v5, 1, v5')
    k('s_lshl_b32 s27, s26, 12\nv_lshl_add_u32 v6, v3, 4, s27')
    k('v_lshlrev_b32 v7, 6, v3\nv_add_u32 v7, 0x%x, v7', STATS)
    k('s_lshl_b32 s27, s26, 2\ns_add_u32 s27, s27, 0x%x\nv_mov_b32 v8, s27', MOD)
    k('s_lshl_b32 s27, s26, 1\nv_mov_b32 v9, s27')
    k('s_waitcnt lgkmcnt(0)')
    stamp(k, 1, 0, vt=(58, 59, 57))
    for i in range(6): k('global_load_ushort v%d, v4, %s', 10 + i, sr(8 + 2 * i, 2))
    k('global_load_ushort v16, v5, s[20:21]')
    k('global_load_dwordx4 v[20:23], v6, s[4:5]')
    for i in range(4): k('global_load_dwordx4 %s, v7, s[4:5] offset:%d', vr(24 + 4 * i, 4), 16 * i)
    k('global_load_dword v17, v8, s[4:5]\nglobal_load_dword v18, v8, s[4:5] offset:2048')
    k('v_add_u32 v8, 0x1000, v8\nglobal_load_dword v19, v8, s[4:5]\nglobal_load_ushort v40, v9, s[22:23]')
    k('s_lshl_b32 s27, s25, 11\ns_add_u32 s27, s27, %d', TB)
    for i in range(8):
        k('v_lshl_add_u32 v52, v3, 3, %d\nv_cvt_f32_u32 v52, v52', i)
        bfround(k, 52, 52)
        k('v_cvt_u32_f32 v52, v52')
        k('v_bfe_u32 v53, v52, 4, 5\nv_and_b32 v54, 15, v52\nv_lshrrev_b32 v55, 9, v52')
        k('v_lshrrev_b32 v56, 2, v54\nv_lshl_add_u32 v56, v55, 2, v56\nv_add_u32 v56, 12, v56')
        k('v_cmp_eq_u32 vcc, 0, v55\nv_cndmask_b32 v54, v56, v54, vcc')
        k('v_lshl_add_u32 v53, v53, 6, s27\nv_lshl_add_u32 v%d, v54, 1, v53', 44 + i)
    k('v_mov_b32 v52, 0\nv_mov_b32 v53, 0\nv_mov_b32 v54, 0\nv_mov_b32 v55, 0')
    k('s_cmp_ge_u32 s3, 3\ns_cbranch_scc1 K2_NZ\ns_cmp_eq_u32 s3, 2\ns_cbranch_scc1 K2_ZH')
    k('s_mul_i32 s27, s3, 5120\ns_add_u32 s27, s27, %d\nv_lshrrev_b32 v56, 4, v1\nv_mul_u32_u24 v56, 1280, v56\nv_and_b32 v57, 15, v1\nv_lshl_add_u32 v56, v57, 4, v56\nv_add_u32 v56, s27, v56', KB)
    k('ds_write_b128 v56, v[52:55]\ns_branch K2_NZ')
    k('K2_ZH:\nv_lshrrev_b32 v56, 2, v1\nv_mul_u32_u24 v56, 4160, v56\nv_and_b32 v57, 3, v1\nv_lshl_add_u32 v56, v57, 4, v56')
    k('ds_write_b128 v56, v[52:55] offset:%d', HB + 4096)
    k('K2_NZ:')
    k('v_lshrrev_b32 v56, 7, v3\nv_mul_u32_u24 v56, 33792, v56\nv_and_b32 v57, 127, v3\nv_lshl_add_u32 v56, v57, 2, v56\nv_add_u32 v56, %d, v56', UVB)
    k('s_waitcnt vmcnt(9)')
    for i in range(7): k('v_lshlrev_b32 v%d, 16, v%d', 10 + i, 10 + i)
    k('v_mul_f32 v16, 0x3fb8aa3b, v16\nv_exp_f32 v16, v16'); bfround(k, 16, 16)
    k('v_mul_f32 v10, v10, v16\nv_mul_f32 v11, v11, v16\nv_mul_f32 v10, 0x3fb8aa3b, v10\nv_mul_f32 v11, 0.15915494, v11')
    k('s_cmp_ge_u32 s3, 4\ns_cbranch_scc1 K2_V')
    k('v_mul_f32 v12, v12, v16\nv_mul_f32 v13, v13, v16')
    cmul(k, 60, 14, 12, 58)
    cexp(k, 64, 10, 11, 16.0, 58); cexp(k, 66, 10, 11, 256.0, 58)
    cmul(k, 68, 60, 66, 58)
    A = [60, 62]; B = [68, 70]
    for i in range(16):
        a, b = A[i & 1], B[i & 1]
        k('v_cvt_pk_bf16_f32 v72, v%d, v%d\nv_cvt_pk_bf16_f32 v73, v%d, v%d', a, a + 1, b, b + 1)
        if i < 15:
            cmul(k, A[1 - (i & 1)], a, 64, 58); cmul(k, B[1 - (i & 1)], b, 64, 74)
        k('ds_write_b32 v56, v72 offset:%d\nds_write_b32 v56, v73 offset:%d', i * 528, (i + 16) * 528)
    k('s_branch K2_H')
    k('K2_V:')
    VO = 16896
    def wv(col, r): k('v_cvt_pk_bf16_f32 v72, v%d, -v%d\nds_write_b32 v56, v72 offset:%d', r, r + 1, VO + col * 528)
    k('v_mov_b32 v72, 0x3f80\nds_write_b32 v56, v72 offset:%d', VO)
    cexp(k, 64, 10, 11, 1.0, 58); cexp(k, 96, 10, 11, 8.0, 58)
    cexp(k, 76, 10, 11, 512.0, 58); cexp(k, 78, 10, 11, 1024.0, 58)
    k('v_mov_b32 v82, v64\nv_mov_b32 v83, v65')
    wv(1, 82); wv(8, 96)
    for j in range(1, 8):
        if j < 7: cmul(k, 80 + 2 * (j + 1), 80 + 2 * j, 64, 58)
        cmul(k, 80 + 2 * (j + 8), 80 + 2 * (j + 7), 64, 74)
        if j < 7: wv(j + 1, 80 + 2 * (j + 1))
        wv(j + 8, 80 + 2 * (j + 8))
    wv(16, 76); wv(20, 78)
    for i, j in enumerate((4, 8, 12)):
        cmul(k, 60, 76, 80 + 2 * j, 58); wv(17 + i, 60)
    cmul(k, 60, 78, 96, 58); wv(22, 60)
    cmul(k, 62, 76, 78, 58); wv(24, 62)
    cmul(k, 60, 62, 96, 58); wv(26, 60)
    cmul(k, 60, 78, 78, 58); wv(28, 60)
    k('K2_H:')
    stamp(k, 1, 1, vt=(58, 59, 57))
    k('s_waitcnt vmcnt(0)')
    k('v_add_f32 v18, 1.0, v18'); bfround(k, 18, 18); k('v_lshlrev_b32 v40, 16, v40')
    for a in range(4):
        h = 60 + 2 * a
        unpack(k, h, 20 + a)
        k('v_sub_f32 v%d, v%d, v%d\nv_sub_f32 v%d, v%d, v%d', h, h, 24 + 4 * a, h + 1, h + 1, 26 + 4 * a); round2(k, h, 58)
        k('v_mul_f32 v%d, v%d, v%d\nv_mul_f32 v%d, v%d, v%d', h, h, 25 + 4 * a, h + 1, h + 1, 27 + 4 * a); round2(k, h, 58)
        k('v_mul_f32 v%d, v%d, v18\nv_mul_f32 v%d, v%d, v18', h, h, h + 1, h + 1); round2(k, h, 58)
        k('v_add_f32 v%d, v%d, v17\nv_add_f32 v%d, v%d, v17', h, h, h + 1, h + 1)
        k('v_cvt_pk_bf16_f32 v%d, v%d, v%d', 71 - a, h + 1, h)
        round2(k, h, 58)
    k('s_mul_i32 s27, s25, 33280\ns_add_u32 s27, s27, %d\nv_lshlrev_b32 v41, 4, v3\nv_sub_u32 v41, s27, v41', HB + 4080)
    k('ds_write_b128 v41, v[68:71]')
    k('v_and_b32 v52, 15, v1\nv_lshrrev_b32 v53, 4, v1')
    k('v_mul_u32_u24 v54, 528, v52\nv_and_b32 v55, 1, v53\nv_lshl_add_u32 v54, v55, 8, v54\nv_lshrrev_b32 v55, 1, v53\nv_lshl_add_u32 v54, v55, 7, v54')
    k('s_mul_i32 s27, s25, 33792\ns_add_u32 s27, s27, %d', UVB)
    k('s_bfe_u32 s28, s3, 0x10001\ns_and_b32 s29, s3, 1')
    k('s_mul_i32 s30, s28, 8448\ns_add_u32 s30, s30, s27\nv_add_u32 v55, s30, v54')
    k('s_mul_i32 s30, s29, 8448\ns_add_u32 s30, s30, s27\ns_add_u32 s30, s30, 16896\nv_add_u32 v54, s30, v54')
    k('s_waitcnt lgkmcnt(0)\ns_barrier')
    stamp(k, 1, 2, vt=(58, 59, 57))
    k('ds_read_b128 v[72:75], v41 offset:16')
    for ks in range(4): k('ds_read_b128 %s, v54 offset:%d\nds_read_b128 %s, v55 offset:%d', vr(96 + 8 * ks, 4), 16 * ks, vr(100 + 8 * ks, 4), 16 * ks)
    k('s_waitcnt lgkmcnt(0)')
    for ks in range(4): k('ds_read_b128 %s, v54 offset:%d\nds_read_b128 %s, v55 offset:%d', vr(128 + 8 * ks, 4), 64 + 16 * ks, vr(132 + 8 * ks, 4), 64 + 16 * ks)
    for ks in range(4): k('v_mfma_f32_16x16x32_bf16 v[24:27], %s, %s, %s', vr(96 + 8 * ks, 4), vr(100 + 8 * ks, 4), 'v[24:27]' if ks else '0')
    for i in range(6): k('v_mov_b32 v%d, v%d', 76 + i, 69 + i)
    for i in range(6): k('v_alignbit_b32 v%d, v%d, v%d, 16\nv_alignbit_b32 v%d, v%d, v%d, 16', 82 + i, 69 + i, 68 + i, 88 + i, 70 + i, 69 + i)
    k('s_waitcnt lgkmcnt(0)')
    for ks in range(4): k('v_mfma_f32_16x16x32_bf16 v[24:27], %s, %s, v[24:27]', vr(128 + 8 * ks, 4), vr(132 + 8 * ks, 4))
    for s_, r in ((1, 82), (2, 76), (3, 88), (4, 70), (5, 84), (6, 78), (7, 90)):
        k('ds_write_b128 v41, %s offset:%d', vr(r, 4), 4160 * s_)
    k('s_lshl_b32 s27, s25, 11\ns_lshl_b32 s30, s28, 10\ns_add_u32 s27, s27, s30\ns_lshl_b32 s30, s29, 5\ns_add_u32 s27, s27, s30\ns_add_u32 s27, s27, %d', TB)
    k('v_lshl_add_u32 v54, v52, 6, s27\nv_lshl_add_u32 v54, v53, 3, v54')
    k('v_cvt_pk_bf16_f32 v28, v24, v25\nv_cvt_pk_bf16_f32 v29, v26, v27\nds_write_b64 v54, v[28:29]')
    k('s_mul_i32 s27, s25, 5120\ns_add_u32 s27, s27, %d', KB + 256)
    k('v_and_b32 v54, 3, v3\nv_mul_u32_u24 v54, 1280, v54\nv_lshrrev_b32 v55, 2, v3\nv_lshl_add_u32 v54, v55, 4, v54\nv_add_u32 v54, s27, v54')
    k('s_waitcnt lgkmcnt(0)\ns_barrier')
    stamp(k, 1, 3, vt=(58, 59, 57))
    for i in range(8): k('ds_read_u16 v%d, v%d', 28 + i, 44 + i)
    k('s_and_b32 s28, s3, 3')
    k('v_sub_u32 v42, 7, v52\nv_and_b32 v42, 7, v42\nv_mul_u32_u24 v42, 4160, v42')
    k('v_sub_u32 v43, 2047, v52\nv_lshrrev_b32 v43, 3, v43\nv_add_u32 v43, v43, v53\nv_lshl_add_u32 v42, v43, 4, v42')
    k('s_mul_i32 s27, s25, 33280\ns_lshl_b32 s30, s28, 8\ns_sub_u32 s27, s27, s30\ns_add_u32 s27, s27, %d\nv_add_u32 v42, s27, v42', (HB - 192 - 3072 - 32) & 0xffffffff)
    k('v_mul_u32_u24 v43, 1280, v53\nv_lshl_add_u32 v43, v52, 4, v43')
    k('s_mul_i32 s27, s25, 5120\ns_lshl_b32 s30, s28, 6\ns_sub_u32 s27, s27, s30\ns_add_u32 s27, s27, %d\nv_add_u32 v43, s27, v43', KB + 256 - 48)
    k('s_waitcnt lgkmcnt(0)')
    for a in range(4): k('v_lshl_or_b32 v%d, v%d, 16, v%d', 24 + a, 29 + 2 * a, 28 + 2 * a)
    k('ds_write_b128 v54, v[24:27]\ns_waitcnt lgkmcnt(0)\ns_barrier')
    stamp(k, 1, 4, vt=(58, 59, 57))
    ACC = 68; FB = [[100 + 4 * i for i in range(12)], [148, 152, 156, 160, 164, 24, 28, 32, 36, 44, 48, 56]]
    def reads(e):
        f = FB[e & 1]
        for u in range(4): k('ds_read_b128 %s, v43 offset:%d', vr(f[u], 4), 256 * u + 16 * (3 - e))
        for j in range(4):
            for ct in range(2): k('ds_read_b128 %s, v42 offset:%d', vr(f[4 + 2 * j + ct], 4), 64 * (3 - e) + 1024 * (3 - j) + 32 * (1 - ct))
    reads(0)
    for e in range(4):
        k('s_waitcnt lgkmcnt(0)')
        if e < 3: reads(e + 1)
        f = FB[e & 1]
        for j in range(4):
            for R in range(j, 4):
                for ct in range(2):
                    a = ACC + 8 * R + 4 * ct
                    k('v_mfma_f32_16x16x32_bf16 %s, %s, %s, %s', vr(a, 4), vr(f[4 + 2 * j + ct], 4), vr(f[R - j], 4), '0' if (e == 0 and j == 0) else vr(a, 4))
    stamp(k, 1, 5, vt=(58, 59, 57))
    k('s_mul_i32 s27, s3, 9216\ns_add_u32 s27, s27, %d\nv_mul_u32_u24 v54, 144, v52\nv_lshl_add_u32 v54, v53, 4, v54\nv_add_u32 v54, s27, v54', UVB)
    for R in range(4):
        for ct in range(2): k('ds_write_b128 v54, %s offset:%d', vr(ACC + 8 * R + 4 * ct, 4), 2304 * R + 64 * ct)
    k('s_mul_i32 s27, s25, 36864\ns_add_u32 s27, s27, %d\nv_lshrrev_b32 v54, 2, v3\nv_mul_u32_u24 v54, 144, v54\nv_and_b32 v55, 3, v3\nv_lshl_add_u32 v54, v55, 5, v54\nv_add_u32 v54, s27, v54', UVB)
    k('s_waitcnt lgkmcnt(0)\ns_barrier')
    stamp(k, 1, 6, vt=(58, 59, 57))
    for p in range(4): k('ds_read_b128 %s, v54 offset:%d\nds_read_b128 %s, v54 offset:%d', vr(100 + 8 * p, 4), 9216 * p, vr(104 + 8 * p, 4), 9216 * p + 16)
    for a in range(4):
        h = 60 + 2 * a
        k('v_mul_f32 v%d, v%d, v40\nv_mul_f32 v%d, v%d, v40', h, h, h + 1, h + 1); round2(k, h, 58)
    k('s_waitcnt lgkmcnt(0)')
    for i in range(8): k('v_add_f32 v%d, v%d, v%d\nv_add_f32 v%d, v%d, v%d\nv_add_f32 v%d, v%d, v%d', 100 + i, 100 + i, 108 + i, 116 + i, 116 + i, 124 + i, 100 + i, 100 + i, 116 + i)
    for a in range(4):
        y = 100 + 2 * a; h = 60 + 2 * a
        round2(k, y, 58)
        k('v_add_f32 v%d, v%d, v%d\nv_add_f32 v%d, v%d, v%d', y, y, h, y + 1, y + 1, h + 1); round2(k, y, 58)
        k('v_mul_f32 v%d, v%d, v19\nv_mul_f32 v%d, v%d, v19', y, y, y + 1, y + 1); round2(k, y, 58)
        unpack(k, h, 20 + a)
        k('v_add_f32 v%d, v%d, v%d\nv_add_f32 v%d, v%d, v%d\nv_cvt_pk_bf16_f32 v%d, v%d, v%d', y, y, h, y + 1, y + 1, h + 1, 24 + a, y, y + 1)
    k('v_add_u32 v6, 0x%x, v6\nglobal_store_dwordx4 v6, v[24:27], s[4:5]', X1T)
    stamp(k, 1, 7, vt=(58, 59, 57))
    k('s_endpgm')
    k('K2_SIDE:\ns_cmp_ge_u32 s2, 224\ns_cbranch_scc1 K2_END')
    k('s_cmp_ge_u32 s2, 112\ns_cselect_b32 s24, 1, 0\ns_mul_i32 s25, s24, 112\ns_sub_u32 s25, s2, s25')
    k('s_lshl_b32 s26, s24, 3\ns_add_u32 s26, s26, 80\ns_waitcnt lgkmcnt(0)\ns_load_dwordx2 s[8:9], s[0:1], s26')
    k('s_sub_u32 s3, s3, 8')
    k('v_lshrrev_b32 v2, 2, v1\nv_and_b32 v3, 3, v1\nv_lshlrev_b32 v4, 5, v2\nv_lshl_add_u32 v4, v3, 2, v4')
    k('v_lshlrev_b32 v5, 2, v4\nv_add_u32 v5, 0x%x, v5', MOD + 3 * 2048)
    k('global_load_dwordx4 v[8:11], v5, s[4:5]\nglobal_load_dwordx4 v[12:15], v5, s[4:5] offset:64')
    k('global_load_dwordx4 v[16:19], v5, s[4:5] offset:2048\nglobal_load_dwordx4 v[20:23], v5, s[4:5] offset:2112')
    k('s_lshl_b32 s27, s25, 5\ns_lshl_b32 s28, s3, 4\ns_add_u32 s27, s27, s28\nv_mul_u32_u24 v6, 3584, v4\nv_add_u32 v6, s27, v6')
    k('s_waitcnt lgkmcnt(0)')
    stamp(k, 1, 0, vt=(58, 59, 57))
    for i in range(8):
        k('v_add_u32 v7, %d, v6\nglobal_load_dwordx4 %s, v7, s[8:9]', ((i & 3) + 16 * (i >> 2)) * 3584, vr(24 + 4 * i, 4))
    k('s_mul_i32 s27, s25, 0x2493\ns_lshr_b32 s27, s27, 16\ns_mul_i32 s28, s27, 7\ns_sub_u32 s28, s25, s28')
    k('s_mul_i32 s27, s27, 224\ns_mul_i32 s29, s24, 7\ns_add_u32 s27, s27, s29\ns_add_u32 s27, s27, s28\ns_lshl_b32 s27, s27, 10\ns_lshl_b32 s28, s3, 7\ns_add_u32 s27, s27, s28\ns_add_u32 s27, s27, 0x%x', WP)
    k('v_mul_u32_u24 v6, 14336, v2\nv_lshl_add_u32 v6, v3, 8, v6\nv_add_u32 v6, s27, v6')
    k('s_mov_b32 s22, 0x3f803f80\ns_waitcnt vmcnt(8)')
    for i in range(8): k('v_add_f32 v%d, 1.0, v%d', 16 + i, 16 + i); bfround(k, 16 + i, 16 + i)
    for i in range(16): k('v_mov_b32 v%d, 0', 96 + i)
    k('s_waitcnt vmcnt(0)')
    for a in range(4):
        for w in range(4):
            unpack(k, 112, 24 + 8 * a + w); unpack(k, 114, 28 + 8 * a + w)
            k('v_fmac_f32 v%d, v112, v%d\nv_fmac_f32 v%d, v113, v%d', 104 + 2 * w, 8 + 2 * a, 105 + 2 * w, 8 + 2 * a)
            k('v_fmac_f32 v%d, v114, v%d\nv_fmac_f32 v%d, v115, v%d', 104 + 2 * w, 9 + 2 * a, 105 + 2 * w, 9 + 2 * a)
            k('v_mul_f32 v112, v112, v%d\nv_mul_f32 v113, v113, v%d\nv_mul_f32 v114, v114, v%d\nv_mul_f32 v115, v115, v%d', 16 + 2 * a, 16 + 2 * a, 17 + 2 * a, 17 + 2 * a)
            k('v_cvt_pk_bf16_f32 v%d, v112, v114\nv_cvt_pk_bf16_f32 v%d, v113, v115', 60 + 8 * w + a, 64 + 8 * w + a)
    for j in range(8):
        k('global_store_dwordx4 v6, %s, s[4:5] offset:%d', vr(60 + 4 * j, 4), 16 * j)
        for a in range(4): k('v_dot2_f32_bf16 v%d, v%d, s22, v%d', 96 + j, 60 + 4 * j + a, 96 + j)
    for b in (96, 104):
        for i in range(4): k('v_permlane32_swap_b32 v%d, v%d', b + i, b + i + 4)
        for i in range(4): k('v_add_f32 v%d, v%d, v%d', b + i, b + i, b + i + 4)
        for i in range(2): k('v_permlane16_swap_b32 v%d, v%d', b + i, b + i + 2)
        for i in range(2): k('v_add_f32 v%d, v%d, v%d', b + i, b + i, b + i + 2)
    rowsum16(k, [96, 97, 104, 105])
    k('s_mul_i32 s27, s24, 14336\ns_lshl_b32 s28, s25, 6\ns_add_u32 s27, s27, s28\ns_lshl_b32 s28, s3, 5\ns_add_u32 s27, s27, s28\ns_add_u32 s27, s27, 0x%x', ST)
    k('v_lshrrev_b32 v6, 4, v1\nv_lshl_add_u32 v6, v6, 3, s27\nv_add_u32 v7, 7168, v6')
    k('v_and_b32 v8, 15, v1\nv_cmp_eq_u32 vcc, 0, v8\ns_and_saveexec_b64 s[24:25], vcc')
    k('global_store_dwordx2 v6, v[96:97], s[4:5]\nglobal_store_dwordx2 v7, v[104:105], s[4:5]')
    stamp(k, 1, 7, vt=(58, 59, 57))
    k('K2_END:\ns_endpgm')
    return k.L, dict(vgpr=168, lds=K2LDS, grid=256, block=640)
```

```python
from f2 import *
STG, NST, RB = 45056, 3, 3072
AC = 192
def gemm1(k):
    k('s_and_b32 s24, s2, 7\ns_lshr_b32 s25, s2, 3')
    k('s_lshr_b32 s48, s24, 2\ns_lshl_b32 s48, s48, 3\ns_lshr_b32 s26, s25, 2\ns_add_u32 s48, s48, s26')
    k('s_and_b32 s49, s24, 3\ns_lshl_b32 s49, s49, 2\ns_and_b32 s26, s25, 3\ns_add_u32 s49, s49, s26')
    mksrd(k, 8, 0x200000, X1T, 4); mksrd(k, 12, 0x380000, WP, 4)
    k('v_lshrrev_b32 v2, 6, v0\nv_lshrrev_b32 v3, 4, v1\nv_lshl_add_u32 v4, v2, 3, v3')
    k('v_bfe_u32 v5, v1, 1, 3\nv_xor_b32 v6, v5, v3\nv_xor_b32 v7, 4, v6')
    k('v_and_b32 v8, 1, v1\nv_lshlrev_b32 v8, 4, v8\ns_lshl_b32 s24, s48, 8\nv_add_u32 v8, s24, v8\nv_lshl_add_u32 v8, v4, 12, v8')
    k('v_lshl_add_u32 v10, v6, 5, v8\nv_lshl_add_u32 v11, v7, 5, v8\nv_add_u32 v11, 0x4000, v11\nv_lshlrev_b32 v12, 4, v0')
    k('s_mul_i32 s25, s49, %d', 16 * 14336)
    k('s_lshl_b32 s26, s3, 11\ns_add_u32 s26, s26, 3072\ns_lshl_b32 s27, s3, 10\ns_add_u32 s27, s27, 19456')
    k('s_mov_b32 s28, 0x24924925\nv_mul_hi_u32 v13, v0, s28\nv_lshrrev_b32 v13, 4, v13')
    k('v_mul_u32_u24 v14, 112, v13\nv_sub_u32 v14, v0, v14\nv_mul_u32_u24 v15, 7168, v13\nv_lshl_add_u32 v15, v14, 2, v15')
    k('v_cmp_gt_u32 vcc, 448, v0\nv_cndmask_b32 v15, 0, v15, vcc')
    k('v_and_b32 v20, 15, v1\nv_lshrrev_b32 v21, 4, v1\ns_and_b32 s29, s3, 3\ns_lshr_b32 s30, s3, 2')
    k('v_lshrrev_b32 v22, 2, v20\nv_lshl_add_u32 v22, v21, 2, v22\nv_and_b32 v23, 7, v22')
    k('s_lshl_b32 s31, s29, 1\nv_xor_b32 v24, s31, v23\nv_xor_b32 v25, 1, v24')
    k('v_and_b32 v26, 3, v20\nv_lshlrev_b32 v26, 3, v26\nv_lshl_add_u32 v26, v22, 8, v26\nv_add_u32 v26, 3072, v26')
    k('v_lshl_add_u32 v24, v24, 5, v26\nv_lshl_add_u32 v25, v25, 5, v26')
    k('s_lshl_b32 s31, s30, 12\ns_add_u32 s31, s31, 19456\nv_lshl_add_u32 v27, v1, 4, s31')
    for i in range(4): k('v_mov_b32 v%d, 0', 28 + i)
    k('s_lshl_b32 s31, s48, 17\ns_lshl_b32 s32, s29, 15\ns_add_u32 s31, s31, s32\ns_lshl_b32 s32, s49, 10\ns_add_u32 s31, s31, s32\ns_add_u32 s31, s31, 0x%x', X1R)
    k('v_lshl_add_u32 v19, v1, 4, s31\nv_add_u32 v18, 0x4000, v19')
    k('s_mul_i32 s28, s49, 448\ns_add_u32 s28, s28, 0x%x', ST)
    k('s_barrier')
    st(k, 7)
    k('buffer_load_dword v16, v15, s[36:39], s28 offen')
    k('s_cmp_ge_u32 s3, 4\ns_cbranch_scc1 K3_B')
    def dmas(nd):
        L = ['s_add_u32 m0, s26, s50\nbuffer_load_dwordx4 v10, s[8:11], s51 offen lds',
             's_add_u32 m0, m0, 1024\nbuffer_load_dwordx4 v11, s[8:11], s51 offen lds\ns_add_u32 s51, s51, 0x40000']
        for p in range(nd - 2):
            L.append(('s_add_u32 m0, s27, s50' if p == 0 else 's_add_u32 m0, m0, 8192') + '\nbuffer_load_dwordx4 v12, s[12:15], s52 offen lds\ns_add_u32 s52, s52, %d' % (8192 if p < nd - 3 else 28672 - 8192 * p))
        return L
    def body(nft, tag, nd):
        XB = [32, 40]; WB = [48, 48 + 8 * nft]
        def reads(h):
            xb = XB[h]; wb = WB[h]; L = []
            for lt in range(2):
                L.append('ds_read_b64_tr_b16 %s, v%d offset:%d' % (vr(xb + 4 * lt, 2), 3 + lt, 8192 * h))
                L.append('ds_read_b64_tr_b16 %s, v%d offset:%d' % (vr(xb + 4 * lt + 2, 2), 3 + lt, 8192 * h + 4096))
            for m in range(2):
                for ft in range(nft): L.append('ds_read_b128 %s, v5 offset:%d' % (vr(wb + 4 * (m * nft + ft), 4), 14336 * h + 7168 * m + 1024 * ft))
            return L
        def kstep(h, nxt, pend, first, site):
            xb = XB[h]; wb = WB[h]; n = 0
            for m in range(2):
                for ft in range(nft):
                    for lt in range(2):
                        a = AC + (m * nft + ft) * 8 + 4 * lt
                        k('v_mfma_f32_16x16x32_bf16 %s, %s, %s, %s', vr(a, 4), vr(wb + 4 * (m * nft + ft), 4), vr(xb + 4 * lt, 4), '0' if first else vr(a, 4))
                        if nxt: k(nxt.pop(0))
                        if nft == 3 and n < 8:
                            r = xb + n
                            k('v_dot2_f32_bf16 v%d, v%d, s22, v%d\nv_dot2_f32_bf16 v%d, v%d, v%d, v%d', 28 + (n >> 2), r, 28 + (n >> 2), 30 + (n >> 2), r, r, 30 + (n >> 2))
                        if pend and n % 4 == 3: k(pend.pop(0))
                        n += 1
            assert not nxt and not pend
            if nft == 4:
                k('s_cmp_lg_u32 s49, s54\ns_cbranch_scc1 K3_NX%d', site)
                for ad_, o in ((19, 0), (18, 4)): k('buffer_store_dwordx4 %s, v%d, s[36:39], 0 offen sc1', vr(xb + o, 4), ad_)
                k('s_nop 1\nK3_NX%d:', site)
            k('s_add_u32 s54, s54, 1')
        k('s_mov_b32 s50, 0\ns_mov_b32 s51, 0\ns_mov_b32 s52, s25\ns_mov_b32 s54, 0\nK3_PL%s:', tag)
        for l in dmas(nd): k(l)
        k('s_add_u32 s50, s50, %d\ns_cmp_lt_u32 s50, %d\ns_cbranch_scc1 K3_PL%s', STG, 3 * STG, tag)
        k('s_mov_b32 s50, 0\ns_mov_b32 s53, %d\nv_mov_b32 v3, v24\nv_mov_b32 v4, v25\nv_mov_b32 v5, v27', STG)
        k('s_waitcnt vmcnt(%d)\nv_lshlrev_b32 v15, 2, v0\nds_write_b32 v15, v16\ns_barrier', 2 * nd)
        for l in reads(0): k(l)
        k('s_waitcnt lgkmcnt(0)')
        st(k, 8)
        kstep(0, reads(1), [], True, 0)
        k('K3_L%s:\nv_add_u32 v3, s53, v24\nv_add_u32 v4, s53, v25\nv_add_u32 v5, s53, v27', tag)
        k('s_waitcnt lgkmcnt(0)\ns_waitcnt vmcnt(%d)\ns_barrier', nd)
        d = dmas(nd)
        kstep(1, reads(0), d[:3], False, 1)
        k('s_waitcnt lgkmcnt(0)')
        kstep(0, reads(1), d[3:], False, 2)
        k('s_mov_b32 s50, s53\ns_add_u32 s53, s53, %d\ns_cmp_eq_u32 s53, %d\ns_cselect_b32 s53, 0, s53', STG, 3 * STG)
        k('s_cmp_lt_u32 s54, 15\ns_cbranch_scc1 K3_L%s\ns_waitcnt lgkmcnt(0)', tag)
        kstep(1, [], [], False, 3)
    def epilogue():
        st(k, 11)
        k('s_lshl_b32 s31, s29, 8\ns_add_u32 s31, s31, 2048\nv_lshl_add_u32 v22, v20, 3, s31')
        k('ds_read_b64 v[32:33], v22\nds_read_b64 v[34:35], v22 offset:128\ns_lshl_b32 s31, s55, 6\nv_lshl_add_u32 v23, v21, 4, s31')
        k('s_lshl_b32 s31, s48, 1\ns_lshr_b32 s32, s29, 1\ns_add_u32 s31, s31, s32\ns_mul_i32 s31, s31, %d', 56 * 4096)
        k('s_add_u32 s31, s31, 0x%x\nv_lshl_add_u32 v26, v1, 4, s31\ns_and_b32 s32, s29, 1\ns_lshl_b32 s32, s32, 11\ns_mul_i32 s33, s49, 12288\ns_add_u32 s33, s33, s32\ns_lshl_b32 s31, s55, 11\ns_add_u32 s33, s33, s31', HH)
        k('s_lshr_b32 s31, s49, 1\ns_add_u32 s31, s31, 48\ns_lshl_b32 s31, s31, 12\ns_add_u32 s31, s31, s32\ns_and_b32 s32, s49, 1\ns_lshl_b32 s32, s32, 10\ns_add_u32 s34, s31, s32')
        k('s_mov_b32 s57, 0\nK3_EL:')
        S = 72
        for v in range(4): k('ds_read_b128 %s, v23 offset:%d', vr(S + 4 * v, 4), 448 * v)
        k('v_add_u32 v23, 64, v23\ns_add_u32 s59, s57, s58')
        for i in range(4): k('v_mov_b32 v%d, v%d', 36 + (i & 1) + 4 * (i >> 1), 38 + (i & 1) + 4 * (i >> 1))
        k('s_waitcnt lgkmcnt(0)')
        for idx, dst, so in (('s57', 88, 0), ('s59', 96, 8)):
            k('s_set_gpr_idx_on %s, gpr_idx(SRC2)\ns_nop 0', idx)
            for j in range(8): k('v_fma_f32 v%d, -v%d, v%d, v%d', dst + j, 32 + 2 * (j >> 2), S + so + (j & 3), AC + j)
            k('s_set_gpr_idx_off')
        for j in range(8): k('v_fma_f32 v%d, v%d, v%d, v%d', 88 + j, 33 + 2 * (j >> 2), 88 + j, S + 4 + (j & 3))
        for j in range(8): k('v_mul_f32 v%d, 0xbfb8aa3b, v%d', 60 + j, 88 + j)
        for j in range(8): k('v_exp_f32 v%d, v%d\nv_fma_f32 v%d, v%d, v%d, v%d', 60 + j, 60 + j, 96 + j, 33 + 2 * (j >> 2), 96 + j, S + 12 + (j & 3))
        for j in range(8): k('v_add_f32 v%d, 1.0, v%d', 60 + j, 60 + j)
        for j in range(8): k('v_rcp_f32 v%d, v%d\nv_mul_f32 v%d, v%d, v%d', 60 + j, 60 + j, 88 + j, 88 + j, 96 + j)
        for j in range(8): k('v_mul_f32 v%d, v%d, v%d', 88 + j, 88 + j, 60 + j)
        for j in range(4): k('v_cvt_pk_bf16_f32 v%d, v%d, v%d', 38 + (j & 1) + 4 * (j >> 1), 88 + 2 * j, 89 + 2 * j)
        k('s_bitcmp1_b32 s55, 0\ns_cbranch_scc0 K3_EN')
        k('buffer_store_dwordx4 v[36:39], v26, s[36:39], s33 offen sc1\nbuffer_store_dwordx4 v[40:43], v26, s[36:39], s33 offen offset:1024 sc1\ns_add_u32 s33, s33, 4096')
        k('K3_EN:\ns_add_u32 s55, s55, 1\ns_add_u32 s57, s57, 8\ns_cmp_lt_u32 s55, s56\ns_cbranch_scc1 K3_EL')
        k('s_cmp_lt_u32 s55, 7\ns_cbranch_scc1 K3_E')
        k('v_mov_b32 v40, v38\nv_mov_b32 v41, v39\nbuffer_store_dwordx4 v[40:43], v26, s[36:39], s34 offen sc1')
    body(4, 'A', 6)
    k('s_mov_b32 s55, 0\ns_mov_b32 s56, 4\ns_mov_b32 s58, 32\ns_barrier\ns_branch K3_EP\nK3_B:')
    body(3, 'B', 5)
    for r in range(28, 32): k('v_mov_b32 v%d, v%d', r + 8, r)
    for r in range(28, 32): k('v_permlane32_swap_b32 v%d, v%d', r, r + 8)
    for r in range(28, 32): k('v_add_f32 v%d, v%d, v%d', r, r, r + 8)
    for r in range(28, 32): k('v_mov_b32 v%d, v%d', r + 8, r)
    for r in range(28, 32): k('v_permlane16_swap_b32 v%d, v%d', r, r + 8)
    for r in range(28, 32): k('v_add_f32 v%d, v%d, v%d', r, r, r + 8)
    lnstats(k, 28, 30, 32, 33, 40); lnstats(k, 29, 31, 34, 35, 41)
    k('s_lshl_b32 s31, s29, 8\ns_add_u32 s31, s31, 2048\nv_lshl_add_u32 v22, v20, 3, s31')
    k('ds_write_b64 v22, v[32:33]\nds_write_b64 v22, v[34:35] offset:128\ns_waitcnt lgkmcnt(0)\ns_barrier')
    k('s_mov_b32 s55, 4\ns_mov_b32 s56, 7\ns_mov_b32 s58, 24\nK3_EP:\ns_nop 7')
    epilogue()
    k('K3_E:\ns_nop 1\ns_waitcnt vmcnt(0)\ns_barrier')
    st(k, 12)
    k('s_cmp_ge_u32 s3, 4\ns_cbranch_scc1 F_END')
def gemm2(k):
    D = 5
    k('s_cmp_lg_u32 s3, 0\ns_cbranch_scc1 S3_N')
    k('s_lshl_b32 s26, s48, 4\ns_add_u32 s26, s26, s49\ns_lshl_b32 s26, s26, 3\ns_add_u32 s26, s26, 0x%x', FLG3); signal(k, 26)
    k('S3_N:')
    ldptr(k, 24, 'out')
    k('s_and_b32 s28, s2, 7\ns_lshr_b32 s29, s2, 3')
    k('s_lshr_b32 s48, s28, 1\ns_lshl_b32 s48, s48, 3\ns_lshr_b32 s30, s29, 2\ns_add_u32 s48, s48, s30')
    k('s_and_b32 s49, s28, 1\ns_lshl_b32 s49, s49, 2\ns_and_b32 s30, s29, 3\ns_add_u32 s49, s49, s30')
    mksrd(k, 8, 0x700000, HH, 4); mksrd(k, 12, 0x1C0000, W2F, 4)
    k('s_mul_i32 s28, s48, %d\ns_mul_i32 s29, s49, %d\ns_lshl_b32 s30, s3, 12\ns_add_u32 s28, s28, s30\ns_add_u32 s29, s29, s30\nv_lshlrev_b32 v3, 4, v1', 56 * 4096, 56 * 4096)
    def lw(i): return ['buffer_load_dwordx4 %s, v3, s[12:15], s29 offen offset:%d' % (vr(16 + 32 * (i % D) + 4 * t, 4), 1024 * t) for t in range(4)] + ['s_add_u32 s29, s29, 16384']
    def lh(i): return ['buffer_load_dwordx4 %s, v3, s[8:11], s28 offen offset:%d' % (vr(32 + 32 * (i % D) + 4 * t, 4), 1024 * t) for t in range(4)] + ['s_add_u32 s28, s28, 16384']
    k('s_mov_b32 s55, 0x1000000')
    for i in range(D):
        for l in lw(i): k(l)
    k('s_cmp_lg_u32 s3, 0\ns_cbranch_scc1 S3_W')
    k('s_lshr_b32 s30, s48, 1\ns_lshl_b32 s30, s30, 7\ns_add_u32 s30, s30, 0x%x\nv_lshl_add_u32 v187, v1, 4, s30', FLG3)
    poll(k, 'S3_P', 187, 1, 8)
    k('S3_W:\ns_barrier')
    st(k, 13)
    k('s_waitcnt vmcnt(0)')
    for i in range(D):
        for l in lh(i): k(l)
        if i:
            for t in range(4): k('buffer_load_dword v188, v3, s[12:15], s55 offen')
    k('v_and_b32 v4, 15, v1\nv_lshrrev_b32 v5, 4, v1\ns_waitcnt lgkmcnt(0)')
    mksrd(k, 24, 0x200000)
    for i in range(64): k('v_mov_b32 v%d, 0', AC + i)
    k('s_mov_b32 s54, 0\nK4_L:')
    for i in range(D):
        k('s_waitcnt vmcnt(%d)', 8 * (D - 1))
        b = 16 + 32 * i
        if i in (2, 3):
            k('s_cmp_lt_u32 s54, 2\ns_cbranch_scc1 K4_NS%d', i)
            for x, y in ((2, 4), (3, 5), (10, 12), (11, 13)): k('v_swap_b32 v%d, v%d', b + 16 + x, b + 16 + y)
            k('s_nop 1\nK4_NS%d:', i)
        if i == 4: k('s_cmp_eq_u32 s54, 2\ns_cbranch_scc1 K4_X')
        for lt in range(4):
            for dt in range(4):
                a = AC + 16 * lt + 4 * dt
                k('v_mfma_f32_16x16x32_bf16 %s, %s, %s, %s', vr(a, 4), vr(b + 4 * dt, 4), vr(b + 16 + 4 * lt, 4), vr(a, 4))
        for l in lw(i) + lh(i): k(l)
        if i == 3: k('s_cmp_lt_u32 s54, 1\ns_cselect_b32 s28, s28, 0x1000000\ns_cselect_b32 s29, s29, 0x1000000')
    k('s_add_u32 s54, s54, 1\ns_branch K4_L\nK4_X:\ns_waitcnt vmcnt(0)')
    st(k, 14)
    k('s_lshl_b32 s30, s48, 16\ns_lshl_b32 s31, s3, 14\ns_add_u32 s30, s30, s31\ns_lshl_b32 s31, s49, 7\ns_add_u32 s30, s30, s31')
    k('v_lshl_add_u32 v6, v4, 10, s30\nv_lshl_add_u32 v6, v5, 5, v6')
    k('s_lshl_b32 s30, s48, 16\ns_lshl_b32 s31, s3, 14\ns_add_u32 s30, s30, s31\ns_lshl_b32 s31, s49, 11\ns_add_u32 s30, s30, s31\ns_add_u32 s31, s30, 0x%x', X1R)
    k('v_lshrrev_b32 v9, 1, v5\nv_lshlrev_b32 v9, 10, v9\nv_lshl_add_u32 v9, v4, 4, v9\nv_and_b32 v10, 1, v5\nv_lshl_add_u32 v9, v10, 3, v9')
    for dt in range(4): k('buffer_load_dwordx2 %s, v9, s[36:39], s31 offen offset:%d', vr(16 + 2 * dt, 2), 256 * dt)
    k('s_lshl_b32 s31, s49, 8\ns_add_u32 s31, s31, 0x%x\nv_lshlrev_b32 v7, 6, v5', MOD + 5 * 2048)
    for dt in range(4): k('buffer_load_dwordx4 %s, v7, s[36:39], s31 offen offset:%d', vr(24 + 4 * dt, 4), 16 * dt)
    k('s_lshl_b32 s31, s3, 14\nv_add_u32 v8, s31, v3')
    for t in range(16): k('ds_write_b128 v8, %s offset:%d', vr(AC + 4 * t, 4), 1024 * t)
    k('s_lshl_b32 s31, s3, 12\nv_add_u32 v8, s31, v3\ns_waitcnt lgkmcnt(0)\ns_barrier')
    for w in range(4):
        for dt in range(4): k('ds_read_b128 %s, v8 offset:%d', vr(48 + 16 * w + 4 * dt, 4), 16384 * w + 1024 * dt)
        if w == 1: k('s_waitcnt lgkmcnt(0)')
    k('s_waitcnt lgkmcnt(0)')
    for i in range(16): k('v_add_f32 v%d, v%d, v%d\nv_add_f32 v%d, v%d, v%d\nv_add_f32 v%d, v%d, v%d', 48 + i, 48 + i, 64 + i, 80 + i, 80 + i, 96 + i, 48 + i, 48 + i, 80 + i)
    k('s_waitcnt vmcnt(0)')
    for a in range(8):
        unpack(k, 40, 16 + a)
        k('v_fmac_f32 v40, v%d, v%d\nv_fmac_f32 v41, v%d, v%d\nv_cvt_pk_bf16_f32 v%d, v40, v41', 48 + 2 * a, 24 + 2 * a, 49 + 2 * a, 25 + 2 * a, 112 + a)
    k('buffer_store_dwordx4 v[112:115], v6, s[24:27], 0 offen\nbuffer_store_dwordx4 v[116:119], v6, s[24:27], 0 offen offset:16')
    st(k, 15)
def fused():
    k = K()
    prologue(k); roles(k); kgen(k); sync1(k); conv(k); gemm1(k); gemm2(k)
    k('F_END:\ns_endpgm')
    return k.L
if __name__ == '__main__':
    import sys
    NAME = 'adaLN_cond__ssm_conv_s4__glu_gated_swiglu__prompt'
    hdr = open('cdna_kernels/%s.s.ref' % NAME).read().split('; Override launch')[0]
    n = NAME + '_kernel'
    out = [hdr.rstrip(), '; @launch grid=(256,1,1) block=(512,1,1) lds=163840', '.amdgcn_target "amdgcn-amd-amdhsa--gfx950"\n.text']
    out.append('.globl %s\n.p2align 8\n.type %s,@function\n%s:' % (n, n, n)); out += fix(fused())
    out.append('.section .rodata,"a"\n.p2align 6\n.amdhsa_kernel %s\n  .amdhsa_next_free_vgpr 256\n  .amdhsa_next_free_sgpr 64\n  .amdhsa_accum_offset 256\n  .amdhsa_group_segment_fixed_size 0\n  .amdhsa_kernarg_size 144\n  .amdhsa_user_sgpr_count 2\n  .amdhsa_user_sgpr_kernarg_segment_ptr 1\n  .amdhsa_system_sgpr_workgroup_id_x 1\n.end_amdhsa_kernel' % n)
    open(sys.argv[1] if len(sys.argv) > 1 else 'cdna_kernels/%s.s' % NAME, 'w').write('\n'.join(out) + '\n')
```

```python
from asmlib import *
from gen1 import *
from gen2 import cmul, cexp, unpack, round2, fhex, HB, KB, TB, UVB
FLG1, FLG2, FLG3 = 0x1330000, 0x1331000, 0x1332000
WSZ = 0x1334000
CNT = 163824
SC = ' sc1'
ST_V = (184, 185, 186)
DBGS = int(os.environ.get('DBGS', '0'))
def st(k, idx):
    if DBGS and idx in (0, 1, 2, 3, 4, 5, 6, 7, 8, 11, 12, 13, 14, 15):
        j = 2 + (0, 1, 2, 3, 4, 5, 6, 7, 8, 11, 12, 13, 14, 15).index(idx)
        st.n = getattr(st, 'n', 0) + 1
        k('s_cmp_lg_u32 s2, 70\ns_cbranch_scc1 DS%d\ns_cmp_lg_u32 s3, 0\ns_cbranch_scc1 DS%d\ns_memrealtime s[60:61]\nv_mov_b32 v186, %d\ns_waitcnt lgkmcnt(0)\nv_mov_b32 v184, s60\nglobal_store_dword v186, v184, s[6:7]\nDS%d:', st.n, st.n, 4 * j, st.n)
    stamp(k, 0, idx, vt=ST_V)
    if idx == 0: stamp(k, 2, 0, vt=ST_V, ins='s_getreg_b32 s60, hwreg(HW_REG_XCC_ID)\ns_getreg_b32 s61, hwreg(HW_REG_HW_ID)\n;')
    if idx in (0, 15): stamp(k, 1, 1 if idx else 0, vt=ST_V, ins='s_memtime')
def get_tag(k, lab):
    k('v_mov_b32 v176, 0\ns_mov_b32 s42, 0\n%s:\nglobal_load_dwordx2 v[178:179], v176, s[6:7] sc1\ns_waitcnt vmcnt(0)', lab)
    k('v_readfirstlane_b32 s40, v178\nv_readfirstlane_b32 s41, v179\ns_add_u32 s42, s42, 1\ns_cmp_gt_u32 s42, 0x40000\ns_cbranch_scc1 %s_D', lab)
    k('s_cmp_lg_u32 s40, 0\ns_cbranch_scc1 %s_D\ns_sleep 4\ns_branch %s\n%s_D:', lab, lab, lab)
def signal(k, flagoff_sreg):
    k('v_mov_b32 v176, s%d\nv_mov_b32 v178, s40\nv_mov_b32 v179, s41\ns_mov_b64 s[44:45], exec\ns_mov_b64 exec, 1', flagoff_sreg)
    k('global_store_dwordx2 v176, v[178:179], s[4:5] sc1\ns_mov_b64 exec, s[44:45]')
def poll(k, lab, base_v, nld, nl, step=1024):
    k('s_mov_b32 s42, 0\ns_mov_b64 s[44:45], exec\ns_mov_b64 exec, %s\n%s:', '-1' if nl == 64 else hex((1 << nl) - 1) if nl <= 32 else 's[46:47]', lab)
    for i in range(nld): k('global_load_dwordx4 %s, v%d, s[4:5] offset:%d sc1', vr(176 + 4 * i, 4), base_v, step * i)
    k('s_waitcnt vmcnt(0)')
    for i in range(nld):
        for j in range(4): k('v_xor_b32 v%d, s%d, v%d', 176 + 4 * i + j, 40 + (j & 1), 176 + 4 * i + j)
    for i in range(1, 4 * nld): k('v_or_b32 v176, v176, v%d', 176 + i)
    k('v_cmp_ne_u32 vcc, 0, v176\ns_add_u32 s42, s42, 1\ns_cmp_gt_u32 s42, 0x40000\ns_cbranch_scc1 %s_D', lab)
    k('s_nop 2\ns_cbranch_vccz %s_D\ns_sleep 6\ns_branch %s\n%s_D:\ns_mov_b64 exec, s[44:45]', lab, lab, lab)
def roles(k):
    k('s_cmp_lt_u32 s3, 4\ns_cbranch_scc1 R_END\ns_cmp_ge_u32 s2, 232\ns_cbranch_scc1 R_END')
    k('v_lshrrev_b32 v2, 6, v0\nv_subrev_u32 v2, 4, v2')
    k('s_cmp_ge_u32 s2, 176\ns_cbranch_scc1 R_W2\ns_cmp_ge_u32 s2, 112\ns_cbranch_scc1 R_S\ns_cmp_ge_u32 s2, 64\ns_cbranch_scc1 R_MOD')
    ldptr(k, 24, 'u'); k('s_waitcnt lgkmcnt(0)')
    k('v_and_b32 v7, 3, v1\nv_lshrrev_b32 v8, 2, v1\nv_lshl_add_u32 v8, v2, 4, v8\ns_lshl_b32 s26, s2, 5\nv_lshl_add_u32 v3, v7, 3, s26')
    k('v_lshlrev_b32 v4, 10, v3\nv_lshl_add_u32 v4, v8, 4, v4\nv_add_u32 v5, 0x1000, v4')
    for i in range(8): k('global_load_dwordx4 %s, v%d, s[24:25] offset:%d', vr(16 + 4 * i, 4), 4 if i < 4 else 5, (i & 3) * 1024)
    k('v_lshlrev_b32 v6, 15, v8\nv_lshl_add_u32 v6, v3, 1, v6\ns_waitcnt vmcnt(0)')
    transpose8(k, 16, 48, 20, 21)
    for j in range(8): k('s_mov_b32 s26, %d\nbuffer_store_dwordx4 %s, v6, s[36:39], s26 offen sc1', XT + j * 4096, vr(48 + 4 * j, 4))
    k('s_branch R_SIG')
    k('R_S:')
    ldptr(k, 24, 'u'); k('s_waitcnt lgkmcnt(0)')
    k('s_sub_u32 s26, s2, 112\ns_lshl_b32 s26, s26, 5\nv_lshl_add_u32 v3, v2, 3, s26\nv_lshlrev_b32 v4, 10, v3\nv_lshl_add_u32 v4, v1, 4, v4\nv_add_u32 v5, 0x1000, v4')
    for i in range(8): k('global_load_dwordx4 %s, v%d, s[24:25] offset:%d', vr(16 + 4 * i, 4), 4 if i < 4 else 5, (i & 3) * 1024)
    for i in range(16): k('v_mov_b32 v%d, 0', 80 + i)
    for i in range(8):
        k('s_waitcnt vmcnt(%d)', 7 - i)
        for a in range(4):
            k('v_dot2_f32_bf16 v%d, v%d, s22, v%d', 80 + i, 16 + 4 * i + a, 80 + i)
            k('v_dot2_f32_bf16 v%d, v%d, v%d, v%d', 88 + i, 16 + 4 * i + a, 16 + 4 * i + a, 88 + i)
    for b in (80, 88):
        for i in range(4): k('v_permlane32_swap_b32 v%d, v%d', b + i, b + i + 4)
        for i in range(4): k('v_add_f32 v%d, v%d, v%d', b + i, b + i, b + i + 4)
        for i in range(2): k('v_permlane16_swap_b32 v%d, v%d', b + i, b + i + 2)
        for i in range(2): k('v_add_f32 v%d, v%d, v%d', b + i, b + i, b + i + 2)
    rowsum16(k, [80, 81, 88, 89])
    lnstats(k, 80, 88, 96, 97, 100); lnstats(k, 81, 89, 98, 99, 101)
    k('v_lshrrev_b32 v7, 4, v1\nv_lshl_add_u32 v7, v7, 1, v3\nv_lshlrev_b32 v7, 3, v7\ns_mov_b32 s26, 0x%x', STATS)
    k('v_and_b32 v8, 15, v1\nv_cmp_eq_u32 vcc, 0, v8\ns_and_saveexec_b64 s[44:45], vcc')
    k('buffer_store_dwordx4 v[96:99], v7, s[36:39], s26 offen sc1\ns_mov_b64 exec, s[44:45]\ns_branch R_SIG')
    k('R_MOD:')
    ldptr(k, 24, 'wmod'); ldptr(k, 26, 'c'); k('s_waitcnt lgkmcnt(0)')
    k('s_sub_u32 s28, s2, 64\ns_lshl_b32 s28, s28, 2\ns_add_u32 s28, s28, s3\ns_sub_u32 s28, s28, 4')
    k('v_lshrrev_b32 v3, 1, v1\nv_and_b32 v4, 1, v1\nv_lshlrev_b32 v5, 5, v3')
    k('global_load_dwordx4 v[8:11], v5, s[26:27]\nglobal_load_dwordx4 v[12:15], v5, s[26:27] offset:16')
    k('s_mov_b32 s29, %d\nv_mul_lo_u32 v5, v3, s29\nv_lshl_add_u32 v5, v4, 4, v5\ns_lshl_b32 s29, s28, 5\nv_add_u32 v5, s29, v5', 16 * 6144)
    for i in range(16): k('global_load_dwordx4 %s, v5, s[24:25]\nv_add_u32 v5, 6144, v5', vr(32 + 4 * i, 4))
    k('s_waitcnt vmcnt(16)')
    for i in range(8): unpack(k, 16 + 2 * i, 8 + i)
    for i in range(16):
        k('v_mul_f32 v100, 0xbfb8aa3b, v%d\nv_exp_f32 v100, v100\nv_add_f32 v100, 1.0, v100\nv_rcp_f32 v100, v100\nv_mul_f32 v%d, v%d, v100', 16 + i, 16 + i, 16 + i)
        bfround(k, 16 + i, 16 + i)
    for j in range(8): k('v_mov_b32 v%d, 0', 104 + j)
    for i in range(16):
        k('s_waitcnt vmcnt(%d)', 15 - i)
        for a in range(4):
            unpack(k, 100, 32 + 4 * i + a)
            k('v_fmac_f32 v%d, v100, v%d\nv_fmac_f32 v%d, v101, v%d', 104 + 2 * a, 16 + i, 105 + 2 * a, 16 + i)
    for i in range(4): k('v_permlane32_swap_b32 v%d, v%d', 104 + i, 108 + i)
    for i in range(4): k('v_add_f32 v%d, v%d, v%d', 104 + i, 104 + i, 108 + i)
    for i in range(2): k('v_permlane16_swap_b32 v%d, v%d', 104 + i, 106 + i)
    for i in range(2): k('v_add_f32 v%d, v%d, v%d', 104 + i, 104 + i, 106 + i)
    for mode in ('row_ror:8', 'row_ror:4', 'row_ror:2'):
        for i in range(2): k('v_add_f32_dpp v%d, v%d, v%d %s row_mask:0xf bank_mask:0xf', 104 + i, 104 + i, 104 + i, mode)
    bfround(k, 104, 104); bfround(k, 105, 105)
    k('v_lshrrev_b32 v6, 4, v1\nv_lshlrev_b32 v6, 3, v6\nv_lshl_add_u32 v6, v4, 5, v6\ns_lshl_b32 s29, s28, 6\ns_add_u32 s29, s29, 0x%x', MOD)
    k('v_and_b32 v8, 14, v1\nv_cmp_eq_u32 vcc, 0, v8\ns_and_saveexec_b64 s[44:45], vcc')
    k('buffer_store_dwordx2 v[104:105], v6, s[36:39], s29 offen sc1\ns_mov_b64 exec, s[44:45]')
    k('R_SIG:')
    get_tag(k, 'R_TAG')
    k('v_mov_b32 v8, %d\nv_mov_b32 v9, 1\ns_mov_b64 s[44:45], exec\ns_mov_b64 exec, 1\nds_add_rtn_u32 v9, v8, v9\ns_waitcnt lgkmcnt(0)\ns_mov_b64 exec, s[44:45]', CNT)
    k('v_readfirstlane_b32 s26, v9\ns_cmp_lg_u32 s26, 3\ns_cbranch_scc1 R_END')
    k('s_lshl_b32 s26, s2, 3\ns_add_u32 s26, s26, 0x%x', FLG1); signal(k, 26)
    k('s_branch R_END')
    k('R_W2:')
    ldptr(k, 24, 'w2'); k('s_waitcnt lgkmcnt(0)')
    k('s_sub_u32 s28, s2, 176\ns_mul_i32 s29, s28, 0x5556\ns_lshr_b32 s29, s29, 16\ns_lshl_b32 s30, s28, 1\ns_add_u32 s29, s29, s30\ns_mov_b32 s30, 1')
    k('s_cmp_lt_u32 s28, 48\ns_cbranch_scc1 R_W2a\ns_sub_u32 s29, s28, 48\ns_mul_i32 s29, s29, 14\ns_add_u32 s29, s29, 6\ns_mov_b32 s30, 7\nR_W2a:')
    k('s_lshl_b32 s29, s29, 14\ns_lshl_b32 s30, s30, 14')
    k('v_and_b32 v4, 1, v2\nv_lshlrev_b32 v4, 13, v4\nv_lshrrev_b32 v5, 1, v2\nv_lshl_add_u32 v4, v5, 10, v4\nv_lshl_add_u32 v4, v1, 4, v4\nv_add_u32 v4, s29, v4')
    k('v_add_u32 v5, 0x1000, v4\nv_add_u32 v6, s30, v4\nv_add_u32 v7, s30, v5')
    for i in range(8): k('global_load_dwordx4 %s, v%d, s[24:25] offset:%d', vr(16 + 4 * i, 4), 4 + (i >> 1), (i & 1) * 2048)
    k('v_mul_u32_u24 v8, 8320, v2\nv_lshrrev_b32 v9, 5, v1\nv_mul_u32_u24 v9, 4160, v9\nv_add_u32 v9, v9, v8')
    k('v_bfe_u32 v10, v1, 3, 2\nv_lshl_add_u32 v9, v10, 10, v9\nv_and_b32 v10, 1, v1\nv_lshl_add_u32 v9, v10, 9, v9\nv_bfe_u32 v10, v1, 1, 2\nv_lshl_add_u32 v9, v10, 6, v9')
    k('v_lshl_add_u32 v8, v1, 4, v8')
    k('v_lshrrev_b32 v6, 4, v1\nv_lshlrev_b32 v6, 10, v6\nv_and_b32 v7, 15, v1\nv_lshl_add_u32 v6, v7, 4, v6\nv_lshl_add_u32 v6, v2, 8, v6')
    k('s_lshl_b32 s29, s28, 12\ns_add_u32 s29, s29, 0x%x\ns_waitcnt vmcnt(0)', W2F)
    transpose8(k, 16, 48, 20, 21)
    for j in range(8): k('ds_write_b128 v9, %s offset:%d', vr(48 + 4 * j, 4), (j >> 2) * 256 + (j & 3) * 16)
    k('s_waitcnt lgkmcnt(0)')
    for j in range(8): k('ds_read_b128 %s, v8 offset:%d', vr(16 + 4 * j, 4), (j >> 2) * 4160 + (j & 3) * 1024)
    for j in range(8): k('s_waitcnt lgkmcnt(%d)\nbuffer_store_dwordx4 %s, v6, s[36:39], s29 offen sc1\ns_add_u32 s29, s29, %d', 7 - j, vr(16 + 4 * j, 4), 56 * 4096)
    k('R_END:')
```

```python
from asmlib import *
from gen1 import *
from gen2 import cmul, cexp, unpack, round2, fhex, HB, KB, TB, UVB
FLG1, FLG2, FLG3 = 0x1330000, 0x1338000, 0x1328000
WSZ = 0x1340000
CNT = 163808
SC = ' sc1'
ST_V = (182, 183, 181)
DBGS = int(os.environ.get('DBGS', '0'))
def st(k, idx):
    if DBGS and idx in (0, 1, 2, 3, 4, 5, 6, 7, 8, 11, 12, 13, 14, 15):
        j = 2 + (0, 1, 2, 3, 4, 5, 6, 7, 8, 11, 12, 13, 14, 15).index(idx)
        st.n = getattr(st, 'n', 0) + 1
        k('s_cmp_lg_u32 s2, 70\ns_cbranch_scc1 DS%d\ns_cmp_lg_u32 s3, 0\ns_cbranch_scc1 DS%d\ns_memrealtime s[60:61]\nv_mov_b32 v181, %d\ns_waitcnt lgkmcnt(0)\nv_mov_b32 v182, s60\nglobal_store_dword v181, v182, s[6:7]\nDS%d:', st.n, st.n, 4 * j, st.n)
    stamp(k, 0, idx, vt=ST_V)
    if idx == 0: stamp(k, 2, 0, vt=ST_V, ins='s_getreg_b32 s60, hwreg(HW_REG_XCC_ID)\ns_getreg_b32 s61, hwreg(HW_REG_HW_ID)\n;')
    stamp(k, 1, idx, vt=ST_V, ins='s_memtime')
SLP = int(os.environ.get('SLP', '6')); SLP0 = int(os.environ.get('SLP0', '8'))
def get_tag(k, lab):
    k('v_mov_b32 v176, s35\ns_mov_b32 s42, 0\n%s:\nglobal_load_dwordx2 v[178:179], v176, s[6:7] sc1\ns_waitcnt vmcnt(0)', lab)
    k('v_readfirstlane_b32 s40, v178\nv_readfirstlane_b32 s41, v179\ns_add_u32 s42, s42, 1\ns_cmp_gt_u32 s42, 0x40000\ns_cbranch_scc1 %s_D', lab)
    k('s_cmp_lg_u32 s40, 0\ns_cbranch_scc1 %s_D\ns_sleep 8\ns_branch %s\n%s_D:\nv_or_b32 v178, 1, v178', lab, lab, lab)
def tag_publish(k, lab):
    get_tag(k, lab)
    k('v_mov_b32 v176, %d\nds_write_b64 v176, v[178:179]', CNT + 16)
def tag_lds(k, lab):
    k('v_mov_b32 v176, %d\n%s:\nds_read_b64 v[178:179], v176\ns_waitcnt lgkmcnt(0)\nv_readfirstlane_b32 s40, v178\nv_readfirstlane_b32 s41, v179\ns_cmp_lg_u32 s40, 0\ns_cbranch_scc1 %s_D\ns_sleep 2\ns_branch %s\n%s_D:', CNT + 16, lab, lab, lab, lab)
def signal(k, base, R=16):
    k('s_add_u32 s43, s46, 0x%x\nv_lshl_add_u32 v176, v1, 11, s43\nv_mov_b32 v178, s40\nv_mov_b32 v179, s41\ns_mov_b64 exec, 0x%x', base, (1 << R) - 1)
    k('global_store_dwordx2 v176, v[178:179], s[4:5] sc1\ns_mov_b64 exec, -1')
def poll(k, lab, base_v, nld, nl, slp0=0):
    k('s_mov_b32 s42, 0\ns_mov_b64 exec, %s', '-1' if nl == 64 else hex((1 << nl) - 1))
    if slp0: k('s_sleep %d', slp0)
    k('%s:', lab)
    for i in range(nld): k('global_load_dwordx4 %s, v%d, s[4:5] offset:%d sc1', vr(176 + 4 * i, 4), base_v, 1024 * i)
    k('s_waitcnt vmcnt(0)')
    for i in range(nld):
        for j in range(4): k('v_xor_b32 v%d, s%d, v%d', 176 + 4 * i + j, 40 + (j & 1), 176 + 4 * i + j)
    for i in range(1, 4 * nld): k('v_or_b32 v176, v176, v%d', 176 + i)
    k('v_cmp_ne_u32 vcc, 0, v176\ns_add_u32 s42, s42, 1\ns_cmp_gt_u32 s42, 0x40000\ns_cbranch_scc1 %s_D', lab)
    k('s_nop 2\ns_cbranch_vccz %s_D\ns_sleep %d\ns_branch %s\n%s_D:\ns_mov_b64 exec, -1', lab, SLP if nl == 64 else 3, lab, lab)
def roles(k):
    k('s_cmp_lt_u32 s3, 4\ns_cbranch_scc1 R_END\ns_and_b32 s26, s2, 3\nv_mov_b32 v2, s26\ns_lshr_b32 s31, s2, 2')
    k('s_cmp_eq_u32 s3, 7\ns_cbranch_scc1 R_W2\ns_cmp_eq_u32 s3, 5\ns_cbranch_scc1 R_S\ns_cmp_eq_u32 s3, 6\ns_cbranch_scc1 R_MOD')
    ldptr(k, 24, 'u'); k('s_waitcnt lgkmcnt(0)')
    k('v_and_b32 v7, 3, v1\nv_lshrrev_b32 v8, 2, v1\nv_lshl_add_u32 v8, v2, 4, v8\ns_lshl_b32 s26, s31, 5\nv_lshl_add_u32 v3, v7, 3, s26')
    k('v_lshlrev_b32 v4, 10, v3\nv_lshl_add_u32 v4, v8, 4, v4\nv_add_u32 v5, 0x1000, v4')
    for i in range(8): k('global_load_dwordx4 %s, v%d, s[24:25] offset:%d', vr(16 + 4 * i, 4), 4 if i < 4 else 5, (i & 3) * 1024)
    k('v_lshlrev_b32 v6, 15, v8\nv_lshl_add_u32 v6, v3, 1, v6\ns_waitcnt vmcnt(0)')
    transpose8(k, 16, 48, 20, 21)
    for j in range(8): k('s_mov_b32 s26, %d\nbuffer_store_dwordx4 %s, v6, s[36:39], s26 offen sc1', XT + j * 4096, vr(48 + 4 * j, 4))
    k('s_branch R_SIG')
    k('R_S:')
    ldptr(k, 24, 'u'); k('s_waitcnt lgkmcnt(0)')
    k('s_lshl_b32 s26, s31, 5\nv_lshl_add_u32 v3, v2, 3, s26\nv_lshlrev_b32 v4, 10, v3\nv_lshl_add_u32 v4, v1, 4, v4\nv_add_u32 v5, 0x1000, v4')
    for i in range(8): k('global_load_dwordx4 %s, v%d, s[24:25] offset:%d', vr(16 + 4 * i, 4), 4 if i < 4 else 5, (i & 3) * 1024)
    for i in range(16): k('v_mov_b32 v%d, 0', 80 + i)
    for i in range(8):
        k('s_waitcnt vmcnt(%d)', 7 - i)
        for a in range(4):
            k('v_dot2_f32_bf16 v%d, v%d, s22, v%d', 80 + i, 16 + 4 * i + a, 80 + i)
            k('v_dot2_f32_bf16 v%d, v%d, v%d, v%d', 88 + i, 16 + 4 * i + a, 16 + 4 * i + a, 88 + i)
    for b in (80, 88):
        for i in range(4): k('v_permlane32_swap_b32 v%d, v%d', b + i, b + i + 4)
        for i in range(4): k('v_add_f32 v%d, v%d, v%d', b + i, b + i, b + i + 4)
        for i in range(2): k('v_permlane16_swap_b32 v%d, v%d', b + i, b + i + 2)
        for i in range(2): k('v_add_f32 v%d, v%d, v%d', b + i, b + i, b + i + 2)
    rowsum16(k, [80, 81, 88, 89])
    lnstats(k, 80, 88, 96, 97, 100); lnstats(k, 81, 89, 98, 99, 101)
    k('v_lshrrev_b32 v7, 4, v1\nv_lshl_add_u32 v7, v7, 1, v3\nv_lshlrev_b32 v7, 3, v7\ns_mov_b32 s26, 0x%x', STATS)
    k('v_and_b32 v8, 15, v1\nv_cmp_eq_u32 vcc, 0, v8\ns_and_saveexec_b64 s[44:45], vcc')
    k('buffer_store_dwordx4 v[96:99], v7, s[36:39], s26 offen sc1\ns_mov_b64 exec, s[44:45]\ns_branch R_SIG')
    k('R_MOD:\ns_cmp_ge_u32 s2, 192\ns_cbranch_scc1 R_SIG')
    ldptr(k, 24, 'wmod'); ldptr(k, 26, 'c'); k('s_waitcnt lgkmcnt(0)')
    k('s_and_b32 s28, s2, 7\ns_mul_i32 s28, s28, 24\ns_lshr_b32 s29, s2, 3\ns_add_u32 s28, s28, s29')
    k('v_lshrrev_b32 v3, 1, v1\nv_and_b32 v4, 1, v1\nv_lshlrev_b32 v5, 5, v3')
    k('global_load_dwordx4 v[8:11], v5, s[26:27]\nglobal_load_dwordx4 v[12:15], v5, s[26:27] offset:16')
    k('s_mov_b32 s29, %d\nv_mul_lo_u32 v5, v3, s29\nv_lshl_add_u32 v5, v4, 4, v5\ns_lshl_b32 s29, s28, 5\nv_add_u32 v5, s29, v5', 16 * 6144)
    k('s_waitcnt vmcnt(0)')
    for i in range(16): k('global_load_dwordx4 %s, v5, s[24:25]\nv_add_u32 v5, 6144, v5', vr(32 + 4 * i, 4))
    for i in range(8): unpack(k, 16 + 2 * i, 8 + i)
    for i in range(16):
        k('v_mul_f32 v100, 0xbfb8aa3b, v%d\nv_exp_f32 v100, v100\nv_add_f32 v100, 1.0, v100\nv_rcp_f32 v100, v100\nv_mul_f32 v%d, v%d, v100', 16 + i, 16 + i, 16 + i)
        bfround(k, 16 + i, 16 + i)
    for j in range(8): k('v_mov_b32 v%d, 0', 104 + j)
    for i in range(16):
        k('s_waitcnt vmcnt(%d)', 15 - i)
        for a in range(4):
            unpack(k, 100, 32 + 4 * i + a)
            k('v_pk_fma_f32 %s, v[100:101], %s, %s op_sel:[0,%d,0] op_sel_hi:[1,%d,1]', vr(104 + 2 * a, 2), vr(16 + (i & ~1), 2), vr(104 + 2 * a, 2), i & 1, i & 1)
    for i in range(4): k('v_permlane32_swap_b32 v%d, v%d', 104 + i, 108 + i)
    for i in range(4): k('v_add_f32 v%d, v%d, v%d', 104 + i, 104 + i, 108 + i)
    for i in range(2): k('v_permlane16_swap_b32 v%d, v%d', 104 + i, 106 + i)
    for i in range(2): k('v_add_f32 v%d, v%d, v%d', 104 + i, 104 + i, 106 + i)
    for mode in ('row_ror:8', 'row_ror:4', 'row_ror:2'):
        for i in range(2): k('v_add_f32_dpp v%d, v%d, v%d %s row_mask:0xf bank_mask:0xf', 104 + i, 104 + i, 104 + i, mode)
    bfround(k, 104, 104); bfround(k, 105, 105)
    k('v_lshrrev_b32 v6, 4, v1\nv_lshlrev_b32 v6, 3, v6\nv_lshl_add_u32 v6, v4, 5, v6\ns_lshl_b32 s29, s28, 6\ns_add_u32 s29, s29, 0x%x', MOD)
    k('v_and_b32 v8, 14, v1\nv_cmp_eq_u32 vcc, 0, v8\ns_and_saveexec_b64 s[44:45], vcc')
    k('buffer_store_dwordx2 v[104:105], v6, s[36:39], s29 offen sc1\ns_mov_b64 exec, s[44:45]')
    k('R_SIG:')
    k('s_waitcnt vmcnt(0)')
    k('v_mov_b32 v8, %d\nv_mov_b32 v9, 1\ns_mov_b64 s[44:45], exec\ns_mov_b64 exec, 1\nds_add_rtn_u32 v9, v8, v9\ns_waitcnt lgkmcnt(0)\ns_mov_b64 exec, s[44:45]', CNT)
    k('v_readfirstlane_b32 s26, v9\ns_cmp_lg_u32 s26, 2\ns_cbranch_scc1 R_END')
    tag_lds(k, 'R_TAG'); signal(k, FLG1)
    k('s_branch R_END')
    k('R_W2:\ns_mov_b32 s40, 0\ns_cmp_ge_u32 s2, 224\ns_cbranch_scc1 R_W2T')
    ldptr(k, 24, 'w2'); k('s_waitcnt lgkmcnt(0)')
    k('s_mov_b32 s28, s31\ns_mul_i32 s29, s28, 0x5556\ns_lshr_b32 s29, s29, 16\ns_lshl_b32 s30, s28, 1\ns_add_u32 s29, s29, s30\ns_mov_b32 s30, 1')
    k('s_cmp_lt_u32 s28, 48\ns_cbranch_scc1 R_W2a\ns_sub_u32 s29, s28, 48\ns_mul_i32 s29, s29, 14\ns_add_u32 s29, s29, 6\ns_mov_b32 s30, 7\nR_W2a:')
    k('s_lshl_b32 s29, s29, 14\ns_lshl_b32 s30, s30, 14')
    k('v_and_b32 v4, 1, v2\nv_lshlrev_b32 v4, 13, v4\nv_lshrrev_b32 v5, 1, v2\nv_lshl_add_u32 v4, v5, 10, v4\nv_lshl_add_u32 v4, v1, 4, v4\nv_add_u32 v4, s29, v4')
    k('v_add_u32 v5, 0x1000, v4\nv_add_u32 v6, s30, v4\nv_add_u32 v7, s30, v5')
    for i in range(8): k('global_load_dwordx4 %s, v%d, s[24:25] offset:%d', vr(16 + 4 * i, 4), 4 + (i >> 1), (i & 1) * 2048)
    k('v_mov_b32 v8, 0\nv_lshrrev_b32 v9, 5, v1\nv_mul_u32_u24 v9, 4160, v9\nv_add_u32 v9, v9, v8')
    k('v_bfe_u32 v10, v1, 3, 2\nv_lshl_add_u32 v9, v10, 10, v9\nv_and_b32 v10, 1, v1\nv_lshl_add_u32 v9, v10, 9, v9\nv_bfe_u32 v10, v1, 1, 2\nv_lshl_add_u32 v9, v10, 6, v9')
    k('v_lshl_add_u32 v8, v1, 4, v8')
    k('v_lshrrev_b32 v6, 4, v1\nv_lshlrev_b32 v6, 10, v6\nv_and_b32 v7, 15, v1\nv_lshl_add_u32 v6, v7, 4, v6\nv_lshl_add_u32 v6, v2, 8, v6')
    k('s_lshl_b32 s29, s28, 12\ns_add_u32 s29, s29, 0x%x\ns_waitcnt vmcnt(0)', W2F)
    k('v_mov_b32 v176, s35\nglobal_load_dwordx2 v[178:179], v176, s[6:7] sc1')
    transpose8(k, 16, 48, 20, 21)
    for j in range(8): k('ds_write_b128 v9, %s offset:%d', vr(48 + 4 * j, 4), (j >> 2) * 256 + (j & 3) * 16)
    k('s_waitcnt lgkmcnt(0)')
    k('s_waitcnt vmcnt(0)\nv_readfirstlane_b32 s40, v178\nv_mov_b32 v176, %d\nds_write_b64 v176, v[178:179]', CNT + 16)
    for j in range(8): k('ds_read_b128 %s, v8 offset:%d', vr(16 + 4 * j, 4), (j >> 2) * 4160 + (j & 3) * 1024)
    for j in range(8): k('s_waitcnt lgkmcnt(%d)\nbuffer_store_dwordx4 %s, v6, s[36:39], s29 offen sc1\ns_add_u32 s29, s29, %d', 7 - j, vr(16 + 4 * j, 4), 56 * 4096)
    k('R_W2T:\ns_cmp_lg_u32 s40, 0\ns_cbranch_scc1 R_END\ns_cmp_lt_u32 s2, 224\ns_cbranch_scc1 R_W2U\ns_sleep 64\nR_W2U:')
    tag_publish(k, 'R_TG')
    k('R_END:')

def lsync(k, idx, target, lab):
    k('s_waitcnt lgkmcnt(0)\nv_mov_b32 v180, %d\nv_mov_b32 v181, 1\ns_mov_b64 exec, 1\nds_add_u32 v180, v181\ns_mov_b64 exec, -1\n%s:', CNT + 4 * idx, lab)
    k('s_sleep 1\nds_read_b32 v181, v180\ns_waitcnt lgkmcnt(0)\nv_readfirstlane_b32 s43, v181\ns_cmp_lt_u32 s43, %d\ns_cbranch_scc1 %s', target, lab)
```

```python
from f1 import *
SPB = 154624
def prologue(k):
    k('s_cmp_ge_u32 s2, 256\ns_cbranch_scc1 F_END')
    k('s_load_dwordx16 s[8:23], s[0:1], 8\ns_load_dwordx4 s[4:7], s[0:1], 128\ns_load_dwordx4 s[24:27], s[0:1], 80')
    k('v_lshrrev_b32 v2, 6, v0\nv_and_b32 v1, 63, v0\ns_nop 0\nv_readfirstlane_b32 s3, v2')
    k('v_and_b32 v3, 255, v0\ns_lshl_b32 s28, s2, 9\nv_lshl_add_u32 v4, v3, 1, s28')
    k('s_lshl_b32 s28, s2, 1\nv_lshrrev_b32 v5, 7, v3\nv_add_u32 v5, s28, v5\nv_lshlrev_b32 v5, 1, v5')
    k('v_mov_b32 v6, %d\nv_mov_b32 v8, 0\nv_mov_b32 v9, 0\nds_write_b64 v6, v[8:9]\nds_write_b64 v6, v[8:9] offset:8\nds_write_b64 v6, v[8:9] offset:16', CNT)
    k('s_waitcnt lgkmcnt(0)')
    k('s_mov_b32 s28, s4\ns_mov_b32 s29, s5\ns_mov_b32 s4, s6\ns_mov_b32 s5, s7\ns_mov_b32 s6, s28\ns_mov_b32 s7, s29')
    mksrd(k, 36, WSZ, 0, 4)
    st(k, 0)
    k('s_and_b32 s28, s2, 7\ns_lshr_b32 s29, s2, 3\ns_lshr_b32 s48, s28, 2\ns_lshl_b32 s48, s48, 3\ns_lshr_b32 s30, s29, 2\ns_add_u32 s48, s48, s30')
    k('s_and_b32 s49, s28, 3\ns_lshl_b32 s49, s49, 2\ns_and_b32 s30, s29, 3\ns_add_u32 s49, s49, s30\ns_lshl_b32 s46, s48, 4\ns_add_u32 s46, s46, s49\ns_lshl_b32 s46, s46, 3')
    k('s_or_b32 s28, s2, s3\ns_cmp_lg_u32 s28, 0\ns_cbranch_scc1 P_NT')
    k('s_memrealtime s[40:41]\ns_waitcnt lgkmcnt(0)\ns_or_b32 s40, s40, 1\nv_lshlrev_b32 v176, 3, v1\nv_mov_b32 v178, s40\nv_mov_b32 v179, s41')
    k('s_mov_b32 exec_hi, 0\nglobal_store_dwordx2 v176, v[178:179], s[6:7] sc1\ns_mov_b64 exec, -1\nP_NT:\ns_and_b32 s35, s2, 31\ns_lshl_b32 s35, s35, 3')
    k('v_mov_b32 v176, 0x132f000\nglobal_load_dword v177, v176, s[4:5]')
    for i in range(6): k('global_load_ushort v%d, v4, %s', 120 + i, sr(8 + 2 * i, 2))
    k('global_load_ushort v126, v5, s[20:21]')
    k('s_lshr_b32 s28, s3, 2\ns_lshl_b32 s29, s2, 1\ns_add_u32 s29, s29, s28\ns_lshl_b32 s29, s29, 1\nv_mov_b32 v5, s29\nglobal_load_ushort v127, v5, s[22:23]')
    k('s_and_b32 s30, s2, 7\ns_mul_i32 s30, s30, 28\ns_lshr_b32 s31, s2, 3\ns_min_u32 s31, s31, 27\ns_add_u32 s30, s30, s31\ns_cmp_ge_u32 s30, 112\ns_cselect_b32 s32, 1, 0\ns_cselect_b32 s56, s26, s24\ns_cselect_b32 s57, s27, s25\ns_mul_i32 s33, s32, 112\ns_sub_u32 s33, s30, s33')
    k('s_mov_b32 s20, 0x05040100\ns_mov_b32 s21, 0x07060302\ns_mov_b32 s22, 0x3f803f80')
    k('s_barrier')
def kgen(k):
    k('v_and_b32 v3, 255, v0\ns_lshr_b32 s25, s3, 2\nv_and_b32 v52, 15, v1\nv_lshrrev_b32 v53, 4, v1')
    k('s_cmp_ge_u32 s3, 4\ns_cbranch_scc1 KG_END')
    for i in range(8):
        k('v_lshl_add_u32 v58, v3, 3, %d\nv_cvt_f32_u32 v58, v58', i)
        bfround(k, 58, 58)
        k('v_cvt_u32_f32 v58, v58\nv_bfe_u32 v59, v58, 4, 5\nv_and_b32 v54, 15, v58\nv_lshrrev_b32 v55, 9, v58')
        k('v_lshrrev_b32 v56, 2, v54\nv_lshl_add_u32 v56, v55, 2, v56\nv_add_u32 v56, 12, v56')
        k('v_cmp_eq_u32 vcc, 0, v55\nv_cndmask_b32 v54, v56, v54, vcc')
        k('v_lshlrev_b32 v59, 6, v59\nv_lshl_add_u32 v59, v54, 1, v59\nv_add_u32 v%d, %d, v59', 44 + i, TB)
    k('v_mov_b32 v60, 0\nv_mov_b32 v61, 0\nv_mov_b32 v62, 0\nv_mov_b32 v63, 0')
    k('s_cmp_ge_u32 s3, 3\ns_cbranch_scc1 K2_NZ\ns_cmp_eq_u32 s3, 2\ns_cbranch_scc1 K2_ZH')
    k('s_mul_i32 s27, s3, 5120\ns_add_u32 s27, s27, %d\nv_lshrrev_b32 v56, 4, v1\nv_mul_u32_u24 v56, 1280, v56\nv_and_b32 v57, 15, v1\nv_lshl_add_u32 v56, v57, 4, v56\nv_add_u32 v56, s27, v56', KB)
    k('ds_write_b128 v56, v[60:63]\ns_branch K2_NZ')
    k('K2_ZH:\nv_lshrrev_b32 v56, 2, v1\nv_mul_u32_u24 v56, 4160, v56\nv_and_b32 v57, 3, v1\nv_lshl_add_u32 v56, v57, 4, v56')
    k('ds_write_b128 v56, v[60:63] offset:%d\nK2_NZ:', HB + 4096)
    k('v_lshrrev_b32 v56, 7, v3\nv_mul_u32_u24 v56, 33792, v56\nv_and_b32 v57, 127, v3\nv_lshl_add_u32 v56, v57, 2, v56\nv_add_u32 v56, %d, v56', UVB)
    k('s_waitcnt vmcnt(0)')
    for i in range(7): k('v_lshlrev_b32 v%d, 16, v%d', 10 + i, 120 + i)
    k('v_mul_f32 v16, 0x3fb8aa3b, v16\nv_exp_f32 v16, v16'); bfround(k, 16, 16)
    k('v_mul_f32 v10, v10, v16\nv_mul_f32 v11, v11, v16\nv_mul_f32 v10, 0x3fb8aa3b, v10\nv_mul_f32 v11, 0.15915494, v11')
    k('v_mul_f32 v12, v12, v16\nv_mul_f32 v13, v13, v16')
    cmul(k, 60, 14, 12, 58); cexp(k, 64, 10, 11, 16.0, 58); cexp(k, 66, 10, 11, 256.0, 58); cmul(k, 68, 60, 66, 58)
    A = [60, 62]; B = [68, 70]
    for i in range(16):
        a, b = A[i & 1], B[i & 1]
        k('v_cvt_pk_bf16_f32 v72, v%d, v%d\nv_cvt_pk_bf16_f32 v73, v%d, v%d', a, a + 1, b, b + 1)
        if i < 15: cmul(k, A[1 - (i & 1)], a, 64, 58); cmul(k, B[1 - (i & 1)], b, 64, 74)
        k('ds_write_b32 v56, v72 offset:%d\nds_write_b32 v56, v73 offset:%d', i * 528, (i + 16) * 528)
    VO = 16896
    def wv(col, r): k('v_cvt_pk_bf16_f32 v72, v%d, -v%d\nds_write_b32 v56, v72 offset:%d', r, r + 1, VO + col * 528)
    k('v_mov_b32 v72, 0x3f80\nds_write_b32 v56, v72 offset:%d', VO)
    cexp(k, 82, 10, 11, 1.0, 58); cexp(k, 96, 10, 11, 8.0, 58); cexp(k, 76, 10, 11, 512.0, 58); cexp(k, 78, 10, 11, 1024.0, 58)
    wv(1, 82); wv(8, 96)
    for j in range(1, 8):
        if j < 7: cmul(k, 80 + 2 * (j + 1), 80 + 2 * j, 82, 58)
        cmul(k, 80 + 2 * (j + 8), 80 + 2 * (j + 7), 82, 74)
        if j < 7: wv(j + 1, 80 + 2 * (j + 1))
        wv(j + 8, 80 + 2 * (j + 8))
    wv(16, 76); wv(20, 78)
    for i, j in enumerate((4, 8, 12)): cmul(k, 60, 76, 80 + 2 * j, 58); wv(17 + i, 60)
    cmul(k, 60, 78, 96, 58); wv(22, 60); cmul(k, 62, 76, 78, 58); wv(24, 62)
    cmul(k, 60, 62, 96, 58); wv(26, 60); cmul(k, 60, 78, 78, 58); wv(28, 60)
    k('v_mul_u32_u24 v54, 528, v52\nv_and_b32 v55, 1, v53\nv_lshl_add_u32 v54, v55, 8, v54\nv_lshrrev_b32 v55, 1, v53\nv_lshl_add_u32 v54, v55, 7, v54')
    k('s_lshr_b32 s28, s3, 1\ns_and_b32 s29, s3, 1\ns_mul_i32 s27, s28, 33792\ns_add_u32 s27, s27, %d', UVB)
    k('s_mul_i32 s30, s29, 8448\ns_add_u32 s30, s30, s27\nv_add_u32 v55, s30, v54\ns_add_u32 s30, s27, 16896\nv_add_u32 v54, s30, v54')
    lsync(k, 1, 4, 'KG_S1')
    st(k, 1)
    for hf in range(2):
        for ks in range(4):
            o = 64 * hf + 16 * ks
            k('ds_read_b128 %s, v55 offset:%d\nds_read_b128 %s, v54 offset:%d\nds_read_b128 %s, v54 offset:%d', vr(56 + 12 * ks, 4), o, vr(60 + 12 * ks, 4), o, vr(64 + 12 * ks, 4), o + 8448)
        k('s_waitcnt lgkmcnt(0)')
        for ks in range(4):
            for jt in range(2): k('v_mfma_f32_16x16x32_bf16 %s, %s, %s, %s', vr(24 + 4 * jt, 4), vr(60 + 4 * jt + 12 * ks, 4), vr(56 + 12 * ks, 4), vr(24 + 4 * jt, 4) if (ks or hf) else '0')
    k('s_lshl_b32 s27, s28, 11\ns_lshl_b32 s30, s29, 10\ns_add_u32 s27, s27, s30\ns_add_u32 s27, s27, %d', TB)
    k('v_lshl_add_u32 v54, v52, 6, s27\nv_lshl_add_u32 v54, v53, 3, v54')
    for jt in range(2): k('v_cvt_pk_bf16_f32 v32, v%d, v%d\nv_cvt_pk_bf16_f32 v33, v%d, v%d\nds_write_b64 v54, v[32:33] offset:%d', 24 + 4 * jt, 25 + 4 * jt, 26 + 4 * jt, 27 + 4 * jt, 32 * jt)
    k('v_and_b32 v54, 3, v3\nv_mul_u32_u24 v54, 1280, v54\nv_lshrrev_b32 v55, 2, v3\nv_lshl_add_u32 v54, v55, 4, v54\nv_add_u32 v54, %d, v54', KB + 256)
    lsync(k, 2, 4, 'KG_S2')
    for c in range(2):
        for i in range(8): k('ds_read_u16 v%d, v%d offset:%d', 28 + i, 44 + i, 2048 * c)
        k('s_waitcnt lgkmcnt(0)')
        for a in range(4): k('v_lshl_or_b32 v%d, v%d, 16, v%d', 24 + a, 29 + 2 * a, 28 + 2 * a)
        k('ds_write_b128 v54, v[24:27] offset:%d', 5120 * c)
    k('KG_END:')
    k('s_and_b32 s28, s3, 3')
    k('v_sub_u32 v42, 7, v52\nv_and_b32 v42, 7, v42\nv_mul_u32_u24 v42, 4160, v42')
    k('v_sub_u32 v43, 2047, v52\nv_lshrrev_b32 v43, 3, v43\nv_add_u32 v43, v43, v53\nv_lshl_add_u32 v42, v43, 4, v42')
    k('s_mul_i32 s27, s25, 33280\ns_lshl_b32 s30, s28, 8\ns_sub_u32 s27, s27, s30\ns_add_u32 s27, s27, %d\nv_add_u32 v42, s27, v42', (HB - 192 - 3072 - 32) & 0xffffffff)
    k('v_mul_u32_u24 v43, 1280, v53\nv_lshl_add_u32 v43, v52, 4, v43')
    k('s_mul_i32 s27, s25, 5120\ns_lshl_b32 s30, s28, 6\ns_sub_u32 s27, s27, s30\ns_add_u32 s27, s27, %d\nv_add_u32 v43, s27, v43', KB + 256 - 48)
    k('s_lshl_b32 s26, s2, 1\ns_add_u32 s26, s26, s25')
    k('s_lshl_b32 s27, s26, 12\nv_lshl_add_u32 v6, v3, 4, s27\nv_lshlrev_b32 v7, 6, v3\nv_add_u32 v7, 0x%x, v7', STATS)
    k('s_lshl_b32 s27, s26, 2\ns_add_u32 s27, s27, 0x%x\nv_mov_b32 v8, s27', MOD + 2048)
    k('v_lshrrev_b32 v9, 5, v0\nv_bfe_u32 v10, v1, 3, 2\nv_lshlrev_b32 v11, 7, v9\nv_lshl_add_u32 v11, v10, 4, v11\nv_add_u32 v11, 0x%x, v11', MOD + 3 * 2048)
    k('s_mul_i32 s27, s25, 33280\ns_add_u32 s27, s27, %d\nv_lshlrev_b32 v41, 4, v3\nv_sub_u32 v41, s27, v41', HB + 4080)
def sync1(k):
    st(k, 2)
    k('v_lshrrev_b32 v232, 5, v0\nv_bfe_u32 v233, v1, 3, 2\nv_lshlrev_b32 v234, 5, v232\nv_lshl_add_u32 v234, v233, 2, v234')
    k('v_and_b32 v235, 7, v1\nv_mul_u32_u24 v236, 3584, v234\nv_lshl_add_u32 v236, v235, 2, v236\ns_lshl_b32 s28, s33, 5\nv_add_u32 v236, s28, v236')
    k('s_cmp_lg_u32 s3, 0\ns_cbranch_scc1 S1_W')
    tag_lds(k, 'S1_TAG')
    k('s_bfe_u32 s47, s2, 0x40003\ns_lshl_b32 s47, s47, 11\nv_lshl_add_u32 v187, v1, 4, s47\nv_add_u32 v187, 0x%x, v187', FLG1)
    poll(k, 'S1_P', 187, 2, 64)
    k('S1_W:\ns_barrier')
    st(k, 3)
def conv(k):
    k('global_load_dwordx4 v[20:23], v6, s[4:5]')
    for i in range(4): k('global_load_dwordx4 %s, v7, s[4:5] offset:%d', vr(24 + 4 * i, 4), 16 * i)
    k('global_load_dword v17, v8, s[4:5] offset:-2048\nglobal_load_dword v18, v8, s[4:5]\nglobal_load_dword v19, v8, s[4:5] offset:2048')
    k('global_load_dwordx4 v[200:203], v11, s[4:5]\nglobal_load_dwordx4 v[204:207], v11, s[4:5] offset:64')
    k('global_load_dwordx4 v[208:211], v11, s[4:5] offset:2048\nglobal_load_dwordx4 v[212:215], v11, s[4:5] offset:2112')
    for i in range(8): k('v_add_u32 v237, %d, v236\nglobal_load_dword v%d, v237, s[56:57]', ((i & 3) + 16 * (i >> 2)) * 3584, 192 + i)
    k('s_mul_i32 s27, s33, 0x2493\ns_lshr_b32 s27, s27, 16\ns_mul_i32 s28, s27, 7\ns_sub_u32 s28, s33, s28')
    k('s_mul_i32 s27, s27, 224\ns_mul_i32 s29, s32, 7\ns_add_u32 s27, s27, s29\ns_add_u32 s27, s27, s28\ns_lshl_b32 s27, s27, 10\ns_add_u32 s27, s27, 0x%x', WP)
    k('v_mul_u32_u24 v12, 14336, v9\nv_lshl_add_u32 v12, v10, 8, v12\nv_and_b32 v13, 7, v1\nv_lshl_add_u32 v12, v13, 4, v12\nv_add_u32 v12, s27, v12\ns_cmp_ge_u32 s2, 224\ns_cselect_b32 s27, 0x4000000, 0\nv_add_u32 v12, s27, v12')
    k('v_lshlrev_b32 v40, 16, v127\ns_waitcnt vmcnt(12)')
    k('v_add_f32 v18, 1.0, v18'); bfround(k, 18, 18)
    for a in range(4):
        h = 60 + 2 * a
        unpack(k, h, 20 + a)
        k('v_sub_f32 v%d, v%d, v%d\nv_sub_f32 v%d, v%d, v%d', h, h, 24 + 4 * a, h + 1, h + 1, 26 + 4 * a)
        k('v_mul_f32 v%d, v%d, v%d\nv_mul_f32 v%d, v%d, v%d', h, h, 25 + 4 * a, h + 1, h + 1, 27 + 4 * a)
        k('v_fma_f32 v%d, v%d, v18, v17\nv_fma_f32 v%d, v%d, v18, v17', h, h, h + 1, h + 1)
        k('v_cvt_pk_bf16_f32 v%d, v%d, v%d', 71 - a, h + 1, h)
    k('ds_write_b128 v41, v[68:71]\ns_waitcnt lgkmcnt(0)\ns_barrier')
    k('ds_read_b128 v[72:75], v41 offset:16')
    for a in range(4): k('v_and_b32 v%d, 0xffff0000, v%d\nv_lshlrev_b32 v%d, 16, v%d', 60 + 2 * a, 71 - a, 61 + 2 * a, 71 - a)
    for i in range(3): k('v_mov_b32 v%d, v%d\nv_alignbit_b32 v%d, v%d, v%d, 16', 76 + i, 69 + i, 82 + i, 69 + i, 68 + i)
    for i in range(2): k('v_alignbit_b32 v%d, v%d, v%d, 16', 88 + i, 70 + i, 69 + i)
    k('s_waitcnt lgkmcnt(0)')
    for i in range(3, 6): k('v_mov_b32 v%d, v%d\nv_alignbit_b32 v%d, v%d, v%d, 16', 76 + i, 69 + i, 82 + i, 69 + i, 68 + i)
    for i in range(2, 6): k('v_alignbit_b32 v%d, v%d, v%d, 16', 88 + i, 70 + i, 69 + i)
    for s_, r in ((4, 70), (1, 82), (2, 76), (3, 88), (5, 84), (6, 78), (7, 90)): k('ds_write_b128 v41, %s offset:%d', vr(r, 4), 4160 * s_)
    k('s_waitcnt lgkmcnt(0)\ns_barrier')
    w = K()
    w('s_waitcnt vmcnt(0)')
    for i in range(8): w('v_add_f32 v%d, 1.0, v%d', 208 + i, 208 + i); bfround(w, 208 + i, 208 + i)
    for i in range(4): w('v_mov_b32 v%d, 0', 224 + i)
    for a in range(4):
        unpack(w, 228, 192 + 2 * a); unpack(w, 230, 193 + 2 * a)
        w('v_fmac_f32 v226, v228, v%d\nv_fmac_f32 v227, v229, v%d\nv_fmac_f32 v226, v230, v%d\nv_fmac_f32 v227, v231, v%d', 200 + 2 * a, 200 + 2 * a, 201 + 2 * a, 201 + 2 * a)
        w('v_mul_f32 v228, v228, v%d\nv_mul_f32 v229, v229, v%d\nv_mul_f32 v230, v230, v%d\nv_mul_f32 v231, v231, v%d', 208 + 2 * a, 208 + 2 * a, 209 + 2 * a, 209 + 2 * a)
        w('v_cvt_pk_bf16_f32 v%d, v228, v230\nv_cvt_pk_bf16_f32 v%d, v229, v231', 216 + a, 220 + a)
        for c in range(2):
            unpack(w, 228, 216 + 4 * c + a); w('v_add_f32 v%d, v%d, v228\nv_add_f32 v%d, v%d, v229', 224 + c, 224 + c, 224 + c, 224 + c)
    w('buffer_store_dwordx4 v[216:219], v12, s[36:39], 0 offen sc1\nbuffer_store_dwordx4 v[220:223], v12, s[36:39], 0 offen offset:128 sc1')
    w('v_permlane32_swap_b32 v224, v226\nv_permlane32_swap_b32 v225, v227\nv_add_f32 v224, v224, v226\nv_add_f32 v225, v225, v227')
    w('v_permlane16_swap_b32 v224, v225\nv_add_f32 v224, v224, v225')
    w('v_add_f32_dpp v224, v224, v224 row_ror:8 row_mask:0xf bank_mask:0xf')
    w('v_lshrrev_b32 v228, 5, v1\nv_lshlrev_b32 v228, 6, v228\nv_lshl_add_u32 v228, v13, 2, v228\nv_bfe_u32 v229, v1, 4, 1\nv_lshl_add_u32 v228, v229, 5, v228\ns_lshl_b32 s27, s3, 7\ns_add_u32 s27, s27, %d\nv_add_u32 v228, s27, v228', SPB)
    WJ = list(w.L)
    st(k, 4)
    ACC = 68; FB = [[100 + 4 * i for i in range(12)], [148, 152, 156, 160, 164, 24, 28, 32, 36, 44, 48, 56]]
    def reads(e):
        f = FB[e & 1]; L = []
        for u in range(4): L.append('ds_read_b128 %s, v43 offset:%d' % (vr(f[u], 4), 256 * u + 16 * (3 - e)))
        for j in range(4):
            for ct in range(2): L.append('ds_read_b128 %s, v42 offset:%d' % (vr(f[4 + 2 * j + ct], 4), 64 * (3 - e) + 1024 * (3 - j) + 32 * (1 - ct)))
        return L
    for l in reads(0): k(l)
    for e in range(4):
        k('s_waitcnt lgkmcnt(0)')
        nxt = reads(e + 1) if e < 3 else []
        f = FB[e & 1]
        for j in range(4):
            for R in range(j, 4):
                for ct in range(2):
                    a = ACC + 8 * R + 4 * ct
                    k('v_mfma_f32_16x16x32_bf16 %s, %s, %s, %s', vr(a, 4), vr(f[4 + 2 * j + ct], 4), vr(f[R - j], 4), '0' if (e == 0 and j == 0) else vr(a, 4))
                    if nxt: k(nxt.pop(0))
                    for _ in range(2):
                        if WJ: k(WJ.pop(0))
    for l in WJ: k(l)
    k('ds_write_b32 v228, v224')
    st(k, 5)
    k('s_mul_i32 s27, s3, 9216\ns_add_u32 s27, s27, %d\nv_mul_u32_u24 v54, 144, v52\nv_lshl_add_u32 v54, v53, 4, v54\nv_add_u32 v54, s27, v54', UVB)
    for R in range(4):
        for ct in range(2): k('ds_write_b128 v54, %s offset:%d', vr(ACC + 8 * R + 4 * ct, 4), 2304 * R + 64 * ct)
    k('s_mul_i32 s27, s25, 36864\ns_add_u32 s27, s27, %d\nv_lshrrev_b32 v54, 2, v3\nv_mul_u32_u24 v54, 144, v54\nv_and_b32 v55, 3, v3\nv_lshl_add_u32 v54, v55, 5, v54\nv_add_u32 v54, s27, v54', UVB)
    k('s_waitcnt lgkmcnt(0)\ns_barrier')
    for p in range(4): k('ds_read_b128 %s, v54 offset:%d\nds_read_b128 %s, v54 offset:%d', vr(100 + 8 * p, 4), 9216 * p, vr(104 + 8 * p, 4), 9216 * p + 16)
    for a in range(4):
        h = 60 + 2 * a
        k('v_mul_f32 v%d, v%d, v40\nv_mul_f32 v%d, v%d, v40', h, h, h + 1, h + 1); round2(k, h, 58)
    k('s_cmp_lg_u32 s3, 7\ns_cbranch_scc1 C_NS\ns_cmp_ge_u32 s2, 224\ns_cbranch_scc1 C_NS')
    k('v_and_b32 v232, 31, v1\nv_lshlrev_b32 v233, 2, v232\nv_add_u32 v233, %d, v233', SPB)
    for w in range(8): k('ds_read_b32 v%d, v233 offset:%d', 236 + w, 128 * w)
    k('s_mul_i32 s27, s32, 14336\ns_lshl_b32 s28, s33, 6\ns_add_u32 s27, s27, s28\ns_add_u32 s27, s27, 0x%x', ST)
    k('v_lshrrev_b32 v233, 4, v232\nv_mul_u32_u24 v233, 7168, v233\nv_and_b32 v232, 15, v232\nv_lshl_add_u32 v233, v232, 2, v233\nv_add_u32 v233, s27, v233\ns_waitcnt lgkmcnt(0)')
    for w in range(1, 8): k('v_add_f32 v236, v236, v%d', 236 + w)
    k('global_store_dword v233, v236, s[4:5] sc1\nC_NS:')
    k('s_waitcnt lgkmcnt(0)')
    for i in range(8): k('v_add_f32 v%d, v%d, v%d\nv_add_f32 v%d, v%d, v%d\nv_add_f32 v%d, v%d, v%d', 100 + i, 100 + i, 108 + i, 116 + i, 116 + i, 124 + i, 100 + i, 100 + i, 116 + i)
    for a in range(4):
        y = 100 + 2 * a; h = 60 + 2 * a
        round2(k, y, 58)
        k('v_add_f32 v%d, v%d, v%d\nv_add_f32 v%d, v%d, v%d', y, y, h, y + 1, y + 1, h + 1); round2(k, y, 58)
        k('v_mul_f32 v%d, v%d, v19\nv_mul_f32 v%d, v%d, v19', y, y, y + 1, y + 1); round2(k, y, 58)
        unpack(k, h, 20 + a)
        k('v_add_f32 v%d, v%d, v%d\nv_add_f32 v%d, v%d, v%d\nv_cvt_pk_bf16_f32 v%d, v%d, v%d', y, y, h, y + 1, y + 1, h + 1, 24 + a, y, y + 1)
    k('v_add_u32 v6, 0x%x, v6\nglobal_store_dwordx4 v6, v[24:27], s[4:5] sc1', X1T)
    k('s_waitcnt vmcnt(0)\ns_barrier')
    st(k, 6)
    k('s_cmp_lg_u32 s3, 0\ns_cbranch_scc1 S2_W')
    signal(k, FLG2)
    k('v_lshl_add_u32 v187, v1, 4, s47\nv_add_u32 v187, 0x%x, v187', FLG2)
    poll(k, 'S2_P', 187, 2, 64, SLP0)
    k('S2_W:')
```

```python
from f2 import *
STG, NST, RB = 45056, 3, 3072
AC = 192
def gemm1(k):
    mksrd(k, 8, 0x200000, X1T, 4); mksrd(k, 12, 0x380000, WP, 4)
    k('v_lshrrev_b32 v2, 6, v0\nv_lshrrev_b32 v3, 4, v1\nv_lshl_add_u32 v4, v2, 3, v3')
    k('v_bfe_u32 v5, v1, 1, 3\nv_xor_b32 v6, v5, v3\nv_xor_b32 v7, 4, v6')
    k('v_and_b32 v8, 1, v1\nv_lshlrev_b32 v8, 4, v8\ns_lshl_b32 s24, s48, 8\nv_add_u32 v8, s24, v8\nv_lshl_add_u32 v8, v4, 12, v8')
    k('v_lshl_add_u32 v10, v6, 5, v8\nv_lshl_add_u32 v11, v7, 5, v8\nv_add_u32 v11, 0x4000, v11\nv_lshlrev_b32 v12, 4, v0')
    k('s_mul_i32 s25, s49, %d', 16 * 14336)
    k('s_lshl_b32 s26, s3, 11\ns_add_u32 s26, s26, 3072\ns_lshl_b32 s27, s3, 10\ns_add_u32 s27, s27, 19456')
    k('s_mov_b32 s28, 0x24924925\nv_mul_hi_u32 v13, v0, s28\nv_lshrrev_b32 v13, 4, v13')
    k('v_mul_u32_u24 v14, 112, v13\nv_sub_u32 v14, v0, v14\nv_mul_u32_u24 v15, 7168, v13\nv_lshl_add_u32 v15, v14, 2, v15')
    k('v_cmp_gt_u32 vcc, 448, v0\nv_cndmask_b32 v15, 0, v15, vcc')
    k('v_and_b32 v20, 15, v1\nv_lshrrev_b32 v21, 4, v1\ns_and_b32 s29, s3, 3\ns_lshr_b32 s30, s3, 2')
    k('v_lshrrev_b32 v22, 2, v20\nv_lshl_add_u32 v22, v21, 2, v22\nv_and_b32 v23, 7, v22')
    k('s_lshl_b32 s31, s29, 1\nv_xor_b32 v24, s31, v23\nv_xor_b32 v25, 1, v24')
    k('v_and_b32 v26, 3, v20\nv_lshlrev_b32 v26, 3, v26\nv_lshl_add_u32 v26, v22, 8, v26\nv_add_u32 v26, 3072, v26')
    k('v_lshl_add_u32 v24, v24, 5, v26\nv_lshl_add_u32 v25, v25, 5, v26')
    k('s_lshl_b32 s31, s30, 12\ns_add_u32 s31, s31, 19456\nv_lshl_add_u32 v27, v1, 4, s31')
    for i in range(4): k('v_mov_b32 v%d, s22', 96 + i)
    k('s_lshl_b32 s31, s48, 17\ns_lshl_b32 s32, s29, 15\ns_add_u32 s31, s31, s32\ns_lshl_b32 s32, s49, 10\ns_add_u32 s31, s31, s32\ns_add_u32 s31, s31, 0x%x', X1R)
    k('v_lshl_add_u32 v19, v1, 4, s31\nv_add_u32 v18, 0x4000, v19')
    k('s_mul_i32 s28, s49, 448\ns_add_u32 s28, s28, 0x%x', ST)
    k('s_barrier')
    st(k, 7)
    k('buffer_load_dword v16, v15, s[36:39], s28 offen')
    k('s_cmp_ge_u32 s3, 4\ns_cbranch_scc1 K3_B')
    def dmas(nd):
        L = ['s_add_u32 m0, s26, s50\nbuffer_load_dwordx4 v10, s[8:11], s51 offen lds',
             's_add_u32 m0, m0, 1024\nbuffer_load_dwordx4 v11, s[8:11], s51 offen lds\ns_add_u32 s51, s51, 0x40000']
        for p in range(nd - 2):
            L.append(('s_add_u32 m0, s27, s50' if p == 0 else 's_add_u32 m0, m0, 8192') + '\nbuffer_load_dwordx4 v12, s[12:15], s52 offen lds\ns_add_u32 s52, s52, %d' % (8192 if p < nd - 3 else 28672 - 8192 * p))
        return L
    def body(nft, tag, nd):
        XB = [32, 40]; WB = [48, 48 + 8 * nft]
        def reads(h):
            xb = XB[h]; wb = WB[h]; L = []
            for lt in range(2):
                L.append('ds_read_b64_tr_b16 %s, v%d offset:%d' % (vr(xb + 4 * lt, 2), 3 + lt, 8192 * h))
                L.append('ds_read_b64_tr_b16 %s, v%d offset:%d' % (vr(xb + 4 * lt + 2, 2), 3 + lt, 8192 * h + 4096))
            for m in range(2):
                for ft in range(nft): L.append('ds_read_b128 %s, v5 offset:%d' % (vr(wb + 4 * (m * nft + ft), 4), 14336 * h + 7168 * m + 1024 * ft))
            return L
        def kstep(h, nxt, pend, first, site):
            xb = XB[h]; wb = WB[h]; n = 0
            for m in range(2):
                for ft in range(nft):
                    for lt in range(2):
                        a = AC + (m * nft + ft) * 8 + 4 * lt
                        k('v_mfma_f32_16x16x32_bf16 %s, %s, %s, %s', vr(a, 4), vr(wb + 4 * (m * nft + ft), 4), vr(xb + 4 * lt, 4), '0' if first else vr(a, 4))
                        if nxt: k(nxt.pop(0))
                        if nft == 3 and n % 3 == 1:
                            x = n // 3; a2 = AC + 48 + 4 * x; xf = vr(xb + 4 * (x & 1), 4)
                            k('v_mfma_f32_16x16x32_bf16 %s, %s, %s, %s', vr(a2, 4), 'v[96:99]' if x < 2 else xf, xf, '0' if first else vr(a2, 4))
                        if pend and (n % 4 == 3 or (first and n % 2 == 1)): k(pend.pop(0))
                        n += 1
            assert not nxt and not pend
            if nft == 4:
                k('s_cmp_lg_u32 s49, s54\ns_cbranch_scc1 K3_NX%d', site)
                for ad_, o in ((19, 0), (18, 4)): k('buffer_store_dwordx4 %s, v%d, s[36:39], 0 offen sc1', vr(xb + o, 4), ad_)
                k('s_nop 1\nK3_NX%d:', site)
            k('s_add_u32 s54, s54, 1')
        k('s_mov_b32 s50, 0\ns_mov_b32 s51, 0\ns_mov_b32 s52, s25\ns_mov_b32 s54, 0\nK3_PL%s:', tag)
        for l in dmas(nd): k(l)
        k('s_add_u32 s50, s50, %d\ns_cmp_lt_u32 s50, %d\ns_cbranch_scc1 K3_PL%s', STG, 2 * STG, tag)
        k('s_mov_b32 s53, %d\nv_mov_b32 v3, v24\nv_mov_b32 v4, v25\nv_mov_b32 v5, v27', STG)
        k('s_waitcnt vmcnt(%d)\nv_lshlrev_b32 v15, 2, v0\nds_write_b32 v15, v16\ns_barrier', nd)
        for l in reads(0): k(l)
        k('s_waitcnt lgkmcnt(0)')
        st(k, 8)
        kstep(0, reads(1), dmas(nd), True, 0)
        k('s_mov_b32 s50, 0')
        k('K3_L%s:\nv_add_u32 v3, s53, v24\nv_add_u32 v4, s53, v25\nv_add_u32 v5, s53, v27', tag)
        k('s_waitcnt lgkmcnt(0)\ns_waitcnt vmcnt(%d)\ns_barrier', nd)
        d = dmas(nd)
        kstep(1, reads(0), d[:3], False, 1)
        k('s_waitcnt lgkmcnt(0)')
        kstep(0, reads(1), d[3:], False, 2)
        k('s_mov_b32 s50, s53\ns_add_u32 s53, s53, %d\ns_cmp_eq_u32 s53, %d\ns_cselect_b32 s53, 0, s53', STG, 3 * STG)
        k('s_cmp_lt_u32 s54, 15\ns_cbranch_scc1 K3_L%s\ns_waitcnt lgkmcnt(0)', tag)
        kstep(1, [], [], False, 3)
    def epilogue():
        st(k, 11)
        k('s_and_b32 s31, s2, 7\ns_lshl_b32 s50, s31, 2\ns_lshr_b32 s33, s2, 6\ns_add_u32 s50, s50, s33\ns_bfe_u32 s51, s2, 0x30003')
        mksrd(k, 8, 0x700000, HH, 4); mksrd(k, 12, 0x1C0000, W2F, 4)
        k('s_mul_i32 s52, s50, %d\ns_mul_i32 s53, s51, %d\ns_lshl_b32 s33, s3, 12\ns_add_u32 s52, s52, s33\ns_add_u32 s53, s53, s33\nv_lshlrev_b32 v3, 4, v1', 56 * 4096, 56 * 4096)
        k('s_lshl_b32 s54, s3, 14\ns_add_u32 s54, s54, %d\ns_mov_b32 s30, s54', RB)
        def grp():
            k('s_mov_b32 m0, s30')
            for t in range(4): k('buffer_load_dwordx4 v3, s[12:15], s53 offen offset:%d lds', 1024 * t)
            k('s_add_u32 s53, s53, 32768\ns_add_u32 s30, s30, 4096')
        k('s_cmp_lt_u32 s3, 4\ns_cbranch_scc1 K3_EG')
        grp()
        k('K3_EG:')
        k('s_lshl_b32 s31, s29, 8\ns_add_u32 s31, s31, 2048\nv_lshl_add_u32 v22, v20, 3, s31')
        k('ds_read_b64 v[32:33], v22\nds_read_b64 v[34:35], v22 offset:128\ns_lshl_b32 s31, s55, 6\nv_lshl_add_u32 v23, v21, 4, s31')
        k('s_lshl_b32 s31, s48, 1\ns_lshr_b32 s32, s29, 1\ns_add_u32 s31, s31, s32\ns_mul_i32 s31, s31, %d', 56 * 4096)
        k('s_add_u32 s31, s31, 0x%x\nv_lshl_add_u32 v26, v1, 4, s31\ns_and_b32 s32, s29, 1\ns_lshl_b32 s32, s32, 11\ns_mul_i32 s33, s49, 12288\ns_add_u32 s33, s33, s32\ns_lshl_b32 s31, s55, 11\ns_add_u32 s33, s33, s31', HH)
        k('s_lshr_b32 s31, s49, 1\ns_add_u32 s31, s31, 48\ns_lshl_b32 s31, s31, 12\ns_add_u32 s31, s31, s32\ns_and_b32 s32, s49, 1\ns_lshl_b32 s32, s32, 10\ns_add_u32 s34, s31, s32')
        k('s_mov_b32 s57, 0\nK3_EL:')
        S = 72
        for v in range(4): k('ds_read_b128 %s, v23 offset:%d', vr(S + 4 * v, 4), 448 * v)
        k('v_add_u32 v23, 64, v23\ns_add_u32 s59, s57, s58')
        grp()
        for i in range(4): k('v_mov_b32 v%d, v%d', 36 + (i & 1) + 4 * (i >> 1), 38 + (i & 1) + 4 * (i >> 1))
        k('s_waitcnt lgkmcnt(0)')
        for idx, dst, so in (('s57', 88, 0), ('s59', 96, 8)):
            k('s_set_gpr_idx_on %s, gpr_idx(SRC2)\ns_nop 0', idx)
            for j in range(8): k('v_fma_f32 v%d, -v%d, v%d, v%d', dst + j, 32 + 2 * (j >> 2), S + so + (j & 3), AC + j)
            k('s_set_gpr_idx_off')
        for j in range(8): k('v_fma_f32 v%d, v%d, v%d, v%d', 88 + j, 33 + 2 * (j >> 2), 88 + j, S + 4 + (j & 3))
        for j in range(8): k('v_mul_f32 v%d, 0xbfb8aa3b, v%d', 60 + j, 88 + j)
        for j in range(8): k('v_exp_f32 v%d, v%d\nv_fma_f32 v%d, v%d, v%d, v%d', 60 + j, 60 + j, 96 + j, 33 + 2 * (j >> 2), 96 + j, S + 12 + (j & 3))
        for j in range(8): k('v_add_f32 v%d, 1.0, v%d', 60 + j, 60 + j)
        for j in range(8): k('v_rcp_f32 v%d, v%d\nv_mul_f32 v%d, v%d, v%d', 60 + j, 60 + j, 88 + j, 88 + j, 96 + j)
        for j in range(8): k('v_mul_f32 v%d, v%d, v%d', 88 + j, 88 + j, 60 + j)
        for j in range(4): k('v_cvt_pk_bf16_f32 v%d, v%d, v%d', 38 + (j & 1) + 4 * (j >> 1), 88 + 2 * j, 89 + 2 * j)
        k('s_bitcmp1_b32 s55, 0\ns_cbranch_scc0 K3_EN')
        k('buffer_store_dwordx4 v[36:39], v26, s[36:39], s33 offen sc1\nbuffer_store_dwordx4 v[40:43], v26, s[36:39], s33 offen offset:1024 sc1\ns_add_u32 s33, s33, 4096')
        k('K3_EN:\ns_add_u32 s55, s55, 1\ns_add_u32 s57, s57, 8\ns_cmp_lt_u32 s55, s56\ns_cbranch_scc1 K3_EL')
        k('s_cmp_lt_u32 s55, 7\ns_cbranch_scc1 K3_E')
        k('v_mov_b32 v40, v38\nv_mov_b32 v41, v39\nbuffer_store_dwordx4 v[40:43], v26, s[36:39], s34 offen sc1')
    body(4, 'A', 6)
    k('s_mov_b32 s55, 0\ns_mov_b32 s56, 4\ns_mov_b32 s58, 32\ns_waitcnt vmcnt(0)\ns_barrier\ns_branch K3_EP\nK3_B:')
    body(3, 'B', 5)
    k('v_and_b32 v36, 3, v20\nv_lshrrev_b32 v37, 2, v20\ns_nop 4')
    for lt in range(2):
        k('v_mov_b32 v%d, v%d', 30 + lt, AC + 56 + 4 * lt)
        for r in range(1, 4): k('v_cmp_eq_u32 vcc, %d, v36\nv_cndmask_b32 v%d, v%d, v%d, vcc', r, 30 + lt, 30 + lt, AC + 56 + 4 * lt + r)
    lnstats(k, AC + 48, 30, 32, 33, 40); lnstats(k, AC + 52, 31, 34, 35, 41)
    k('s_lshl_b32 s31, s29, 8\ns_add_u32 s31, s31, 2048\nv_lshl_add_u32 v22, v20, 3, s31\nv_cmp_eq_u32 vcc, v37, v21\ns_and_saveexec_b64 s[44:45], vcc')
    k('ds_write_b64 v22, v[32:33]\nds_write_b64 v22, v[34:35] offset:128\ns_mov_b64 exec, s[44:45]\ns_waitcnt vmcnt(0) lgkmcnt(0)\ns_barrier')
    k('s_mov_b32 s55, 4\ns_mov_b32 s56, 7\ns_mov_b32 s58, 24\nK3_EP:\ns_nop 7')
    epilogue()
    k('K3_E:\ns_nop 1')
    k('s_waitcnt vmcnt(0)\ns_barrier')
    st(k, 12)
def gemm2(k):
    k('s_cmp_lg_u32 s3, 0\ns_cbranch_scc1 S3_N')
    signal(k, FLG3, 1)
    k('S3_N:')
    k('s_mov_b64 s[24:25], s[72:73]')
    for i in range(3):
        for t in range(4): k('buffer_load_dwordx4 %s, v3, s[12:15], s53 offen offset:%d', vr(128 + 16 * i + 4 * t, 4), 1024 * t)
        k('s_add_u32 s53, s53, 32768')
    k('v_and_b32 v4, 15, v1\nv_lshrrev_b32 v5, 4, v1\nv_add_u32 v8, s54, v3\ns_lshr_b32 s28, s3, 1\ns_and_b32 s29, s3, 1')
    k('s_lshl_b32 s31, s51, 8\ns_lshl_b32 s30, s29, 5\ns_add_u32 s31, s31, s30\ns_add_u32 s31, s31, 0x%x\nv_lshlrev_b32 v7, 6, v5', MOD + 5 * 2048)
    k('buffer_load_dwordx4 v[8+4:8+7], v7, s[36:39], s31 offen\nbuffer_load_dwordx4 v[184:187], v7, s[36:39], s31 offen offset:16'.replace('v[8+4:8+7]', 'v[12:15]'))
    k('s_lshl_b32 s30, s50, 16\ns_lshl_b32 s31, s28, 14\ns_add_u32 s30, s30, s31\ns_lshl_b32 s31, s51, 7\ns_add_u32 s31, s30, s31\ns_lshl_b32 s32, s29, 4\ns_add_u32 s31, s31, s32')
    k('v_lshl_add_u32 v6, v4, 10, s31\nv_lshl_add_u32 v6, v5, 5, v6')
    k('s_lshl_b32 s31, s51, 11\ns_add_u32 s30, s30, s31\ns_lshl_b32 s31, s29, 9\ns_add_u32 s30, s30, s31\ns_add_u32 s55, s30, 0x%x', X1R)
    k('v_lshrrev_b32 v9, 1, v5\nv_lshlrev_b32 v9, 10, v9\nv_lshl_add_u32 v9, v4, 4, v9\nv_and_b32 v10, 1, v5\nv_lshl_add_u32 v9, v10, 3, v9')
    k('s_cmp_lg_u32 s3, 0\ns_cbranch_scc1 S3_W')
    k('s_lshr_b32 s30, s50, 1\ns_lshl_b32 s30, s30, 7\ns_add_u32 s30, s30, 0x%x\nv_lshl_add_u32 v11, v1, 4, s30', FLG3)
    poll(k, 'S3_P', 11, 1, 8)
    k('S3_W:\ns_waitcnt vmcnt(0)\nv_mov_b32 v2, v184\nv_mov_b32 v7, v185\nv_mov_b32 v10, v186\nv_mov_b32 v11, v187\ns_barrier')
    st(k, 13)
    for i in range(7):
        for t in range(4): k('buffer_load_dwordx4 %s, v3, s[8:11], s52 offen offset:%d', vr(16 + 16 * i + 4 * t, 4), 1024 * t)
        k('s_add_u32 s52, s52, 32768')
    k('s_waitcnt lgkmcnt(0)')
    mksrd(k, 24, 0x200000)
    for i in range(7):
        wb = 176 if i < 4 else 128 + 16 * (i - 4); b = 16 + 16 * i
        if i < 4:
            for t in range(4): k('ds_read_b128 %s, v8 offset:%d', vr(176 + 4 * t, 4), 4096 * i + 1024 * t)
        k('s_waitcnt vmcnt(%d) lgkmcnt(0)', 4 * (6 - i) + (2 if i > 0 else 0))
        if i == 6:
            for x, y in ((2, 4), (3, 5), (10, 12), (11, 13)): k('v_swap_b32 v%d, v%d', b + x, b + y)
        for lt in range(4):
            for dt in range(4):
                a = AC + 16 * lt + 4 * dt
                k('v_mfma_f32_16x16x32_bf16 %s, %s, %s, %s', vr(a, 4), vr(wb + 4 * dt, 4), vr(b + 4 * lt, 4), '0' if i == 0 else vr(a, 4))
        if i == 0:
            for dt in range(2): k('buffer_load_dwordx2 %s, v9, s[36:39], s55 offen offset:%d', vr(16 + 2 * dt, 2), 256 * dt)
    st(k, 14)
    for t in range(16): k('ds_write_b128 v8, %s offset:%d', vr(AC + 4 * t, 4), 1024 * t)
    k('s_lshl_b32 s31, s3, 11\ns_add_u32 s31, s31, %d\nv_add_u32 v8, s31, v3\nv_add_u32 v9, 0x10000, v8\ns_waitcnt lgkmcnt(0)\ns_barrier', RB)
    for w in range(8):
        for dt in range(2): k('ds_read_b128 %s, v%d offset:%d', vr(32 + 8 * w + 4 * dt, 4), 8 + (w >> 2), 16384 * (w & 3) + 1024 * dt)
        if w == 3: k('s_waitcnt lgkmcnt(0)')
    for i in range(8): k('v_add_f32 v%d, v%d, v%d\nv_add_f32 v%d, v%d, v%d\nv_add_f32 v%d, v%d, v%d', 32 + i, 32 + i, 40 + i, 48 + i, 48 + i, 56 + i, 32 + i, 32 + i, 48 + i)
    k('s_waitcnt lgkmcnt(0)')
    for i in range(8): k('v_add_f32 v%d, v%d, v%d\nv_add_f32 v%d, v%d, v%d\nv_add_f32 v%d, v%d, v%d\nv_add_f32 v%d, v%d, v%d', 64 + i, 64 + i, 72 + i, 80 + i, 80 + i, 88 + i, 32 + i, 32 + i, 64 + i, 32 + i, 32 + i, 80 + i)
    k('s_waitcnt vmcnt(0)')
    G = [12, 13, 14, 15, 2, 7, 10, 11]
    for a in range(4):
        unpack(k, 20, 16 + a)
        k('v_fmac_f32 v20, v%d, v%d\nv_fmac_f32 v21, v%d, v%d\nv_cvt_pk_bf16_f32 v%d, v20, v21', 32 + 2 * a, G[2 * a], 33 + 2 * a, G[2 * a + 1], 24 + a)
    k('buffer_store_dwordx4 v[24:27], v6, s[24:27], 0 offen')
    st(k, 15)
def fused():
    k = K()
    prologue(k); roles(k); kgen(k); sync1(k); conv(k); gemm1(k); gemm2(k)
    k('F_END:\ns_endpgm')
    return k.L
if __name__ == '__main__':
    import sys
    NAME = 'adaLN_cond__ssm_conv_s4__glu_gated_swiglu__prompt'
    hdr = open('cdna_kernels/%s.s.ref' % NAME).read().split('; Override launch')[0]
    n = NAME + '_kernel'
    out = [hdr.rstrip(), '; @launch grid=(256,1,1) block=(512,1,1) lds=163840', '.amdgcn_target "amdgcn-amd-amdhsa--gfx950"\n.text']
    out.append('.globl %s\n.p2align 8\n.type %s,@function\n%s:' % (n, n, n)); out += fix(fused())
    out.append('.section .rodata,"a"\n.p2align 6\n.amdhsa_kernel %s\n  .amdhsa_next_free_vgpr 256\n  .amdhsa_next_free_sgpr 80\n  .amdhsa_accum_offset 256\n  .amdhsa_group_segment_fixed_size 0\n  .amdhsa_kernarg_size 144\n  .amdhsa_user_sgpr_count 2\n  .amdhsa_user_sgpr_kernarg_segment_ptr 1\n  .amdhsa_system_sgpr_workgroup_id_x 1\n.end_amdhsa_kernel' % n)
    open(sys.argv[1] if len(sys.argv) > 1 else 'cdna_kernels/%s.s' % NAME, 'w').write('\n'.join(out) + '\n')
```

```python
from f1 import *
SPB = 154624
def prologue(k):
    k('s_cmp_ge_u32 s2, 256\ns_cbranch_scc1 F_END')
    k('s_load_dwordx16 s[8:23], s[0:1], 8\ns_load_dwordx4 s[4:7], s[0:1], 128\ns_load_dwordx4 s[24:27], s[0:1], 80\ns_load_dwordx2 s[58:59], s[0:1], 112\ns_load_dwordx2 s[64:65], s[0:1], 0\ns_load_dwordx4 s[68:71], s[0:1], 96\ns_load_dwordx2 s[72:73], s[0:1], 120')
    k('v_lshrrev_b32 v2, 6, v0\nv_and_b32 v1, 63, v0\ns_nop 0\nv_readfirstlane_b32 s3, v2')
    k('v_and_b32 v3, 255, v0\ns_lshl_b32 s28, s2, 9\nv_lshl_add_u32 v4, v3, 1, s28')
    k('s_lshl_b32 s28, s2, 1\nv_lshrrev_b32 v5, 7, v3\nv_add_u32 v5, s28, v5\nv_lshlrev_b32 v5, 1, v5')
    k('v_mov_b32 v6, %d\nv_mov_b32 v8, 0\nv_mov_b32 v9, 0\nds_write_b64 v6, v[8:9]\nds_write_b64 v6, v[8:9] offset:8\nds_write_b64 v6, v[8:9] offset:16', CNT)
    k('s_waitcnt lgkmcnt(0)')
    k('s_mov_b32 s28, s4\ns_mov_b32 s29, s5\ns_mov_b32 s4, s6\ns_mov_b32 s5, s7\ns_mov_b32 s6, s28\ns_mov_b32 s7, s29')
    mksrd(k, 36, WSZ, 0, 4)
    st(k, 0)
    k('s_and_b32 s28, s2, 7\ns_lshr_b32 s29, s2, 3\ns_lshr_b32 s48, s28, 2\ns_lshl_b32 s48, s48, 3\ns_lshr_b32 s30, s29, 2\ns_add_u32 s48, s48, s30')
    k('s_and_b32 s49, s28, 3\ns_lshl_b32 s49, s49, 2\ns_and_b32 s30, s29, 3\ns_add_u32 s49, s49, s30\ns_lshl_b32 s46, s48, 4\ns_add_u32 s46, s46, s49\ns_lshl_b32 s46, s46, 3')
    k('s_or_b32 s28, s2, s3\ns_cmp_lg_u32 s28, 0\ns_cbranch_scc1 P_NT')
    k('s_memrealtime s[40:41]\ns_waitcnt lgkmcnt(0)\ns_or_b32 s40, s40, 1\nv_lshlrev_b32 v176, 3, v1\nv_mov_b32 v178, s40\nv_mov_b32 v179, s41')
    k('s_mov_b32 exec_hi, 0\nglobal_store_dwordx2 v176, v[178:179], s[6:7] sc1\ns_mov_b64 exec, -1\nP_NT:\ns_and_b32 s35, s2, 31\ns_lshl_b32 s35, s35, 3')
    k('v_mov_b32 v176, 0x132f000\nglobal_load_dword v177, v176, s[4:5]')
    k('s_cmp_ge_u32 s3, 4\ns_cbranch_scc1 P_NL')
    for i in range(6): k('global_load_ushort v%d, v4, %s', 120 + i, sr(8 + 2 * i, 2))
    k('global_load_ushort v126, v5, s[20:21]')
    k('P_NL:')
    k('s_lshr_b32 s28, s3, 2\ns_lshl_b32 s29, s2, 1\ns_add_u32 s29, s29, s28\ns_lshl_b32 s29, s29, 1\nv_mov_b32 v5, s29\nglobal_load_ushort v127, v5, s[22:23]')
    k('s_and_b32 s30, s2, 7\ns_mul_i32 s30, s30, 28\ns_lshr_b32 s31, s2, 3\ns_min_u32 s31, s31, 27\ns_add_u32 s30, s30, s31\ns_cmp_ge_u32 s30, 112\ns_cselect_b32 s32, 1, 0\ns_cselect_b32 s56, s26, s24\ns_cselect_b32 s57, s27, s25\ns_mul_i32 s33, s32, 112\ns_sub_u32 s33, s30, s33')
    k('s_cmp_ge_u32 s3, 4\ns_cbranch_scc1 P_NP')
    k('s_lshr_b32 s28, s2, 3\ns_lshl_b32 s28, s28, 2\ns_add_u32 s28, s28, s3\ns_mul_i32 s28, s28, 24576\ns_and_b32 s29, s2, 7\ns_mul_i32 s29, s29, 768\ns_add_u32 s28, s28, s29')
    k('v_min_u32 v6, 47, v1\nv_lshl_add_u32 v6, v6, 4, s28')
    for i in range(4): k('global_load_dwordx4 %s, v6, s[58:59]\nv_add_u32 v6, 6144, v6', vr(128 + 4 * i, 4))
    k('P_NP:')
    k('s_mov_b32 s20, 0x05040100\ns_mov_b32 s21, 0x07060302\ns_mov_b32 s22, 0x3f803f80')
    k('s_barrier')
def kgen(k):
    k('v_and_b32 v3, 255, v0\ns_lshr_b32 s25, s3, 2\nv_and_b32 v52, 15, v1\nv_lshrrev_b32 v53, 4, v1')
    k('s_cmp_ge_u32 s3, 4\ns_cbranch_scc1 KG_END')
    for i in range(8):
        k('v_lshl_add_u32 v58, v3, 3, %d\nv_cvt_f32_u32 v58, v58', i)
        bfround(k, 58, 58)
        k('v_cvt_u32_f32 v58, v58\nv_bfe_u32 v59, v58, 4, 5\nv_and_b32 v54, 15, v58\nv_lshrrev_b32 v55, 9, v58')
        k('v_lshrrev_b32 v56, 2, v54\nv_lshl_add_u32 v56, v55, 2, v56\nv_add_u32 v56, 12, v56')
        k('v_cmp_eq_u32 vcc, 0, v55\nv_cndmask_b32 v54, v56, v54, vcc')
        k('v_lshlrev_b32 v59, 6, v59\nv_lshl_add_u32 v59, v54, 1, v59\nv_add_u32 v%d, %d, v59', 44 + i, TB)
    k('v_mov_b32 v60, 0\nv_mov_b32 v61, 0\nv_mov_b32 v62, 0\nv_mov_b32 v63, 0')
    k('s_cmp_ge_u32 s3, 3\ns_cbranch_scc1 K2_NZ\ns_cmp_eq_u32 s3, 2\ns_cbranch_scc1 K2_ZH')
    k('s_mul_i32 s27, s3, 5120\ns_add_u32 s27, s27, %d\nv_lshrrev_b32 v56, 4, v1\nv_mul_u32_u24 v56, 1280, v56\nv_and_b32 v57, 15, v1\nv_lshl_add_u32 v56, v57, 4, v56\nv_add_u32 v56, s27, v56', KB)
    k('ds_write_b128 v56, v[60:63]\ns_branch K2_NZ')
    k('K2_ZH:\nv_lshrrev_b32 v56, 2, v1\nv_mul_u32_u24 v56, 4160, v56\nv_and_b32 v57, 3, v1\nv_lshl_add_u32 v56, v57, 4, v56')
    k('ds_write_b128 v56, v[60:63] offset:%d\nK2_NZ:', HB + 4096)
    k('v_lshrrev_b32 v56, 7, v3\nv_mul_u32_u24 v56, 33792, v56\nv_and_b32 v57, 127, v3\nv_lshl_add_u32 v56, v57, 2, v56\nv_add_u32 v56, %d, v56', UVB)
    k('s_waitcnt vmcnt(4)')
    for i in range(7): k('v_lshlrev_b32 v%d, 16, v%d', 10 + i, 120 + i)
    k('v_mul_f32 v16, 0x3fb8aa3b, v16\nv_exp_f32 v16, v16'); bfround(k, 16, 16)
    k('v_mul_f32 v10, v10, v16\nv_mul_f32 v11, v11, v16\nv_mul_f32 v10, 0x3fb8aa3b, v10\nv_mul_f32 v11, 0.15915494, v11')
    k('v_mul_f32 v12, v12, v16\nv_mul_f32 v13, v13, v16')
    cmul(k, 60, 14, 12, 58); cexp(k, 64, 10, 11, 16.0, 58); cexp(k, 66, 10, 11, 256.0, 58); cmul(k, 68, 60, 66, 58)
    A = [60, 62]; B = [68, 70]
    for i in range(16):
        a, b = A[i & 1], B[i & 1]
        k('v_cvt_pk_bf16_f32 v72, v%d, v%d\nv_cvt_pk_bf16_f32 v73, v%d, v%d', a, a + 1, b, b + 1)
        if i < 15: cmul(k, A[1 - (i & 1)], a, 64, 58); cmul(k, B[1 - (i & 1)], b, 64, 74)
        k('ds_write_b32 v56, v72 offset:%d\nds_write_b32 v56, v73 offset:%d', i * 528, (i + 16) * 528)
    VO = 16896
    def wv(col, r): k('v_cvt_pk_bf16_f32 v72, v%d, -v%d\nds_write_b32 v56, v72 offset:%d', r, r + 1, VO + col * 528)
    k('v_mov_b32 v72, 0x3f80\nds_write_b32 v56, v72 offset:%d', VO)
    cexp(k, 82, 10, 11, 1.0, 58); cexp(k, 96, 10, 11, 8.0, 58); cexp(k, 76, 10, 11, 512.0, 58); cexp(k, 78, 10, 11, 1024.0, 58)
    wv(1, 82); wv(8, 96)
    for j in range(1, 8):
        if j < 7: cmul(k, 80 + 2 * (j + 1), 80 + 2 * j, 82, 58)
        cmul(k, 80 + 2 * (j + 8), 80 + 2 * (j + 7), 82, 74)
        if j < 7: wv(j + 1, 80 + 2 * (j + 1))
        wv(j + 8, 80 + 2 * (j + 8))
    wv(16, 76); wv(20, 78)
    for i, j in enumerate((4, 8, 12)): cmul(k, 60, 76, 80 + 2 * j, 58); wv(17 + i, 60)
    cmul(k, 60, 78, 96, 58); wv(22, 60); cmul(k, 62, 76, 78, 58); wv(24, 62)
    cmul(k, 60, 62, 96, 58); wv(26, 60); cmul(k, 60, 78, 78, 58); wv(28, 60)
    k('v_mul_u32_u24 v54, 528, v52\nv_and_b32 v55, 1, v53\nv_lshl_add_u32 v54, v55, 8, v54\nv_lshrrev_b32 v55, 1, v53\nv_lshl_add_u32 v54, v55, 7, v54')
    k('s_lshr_b32 s28, s3, 1\ns_and_b32 s29, s3, 1\ns_mul_i32 s27, s28, 33792\ns_add_u32 s27, s27, %d', UVB)
    k('s_mul_i32 s30, s29, 8448\ns_add_u32 s30, s30, s27\nv_add_u32 v55, s30, v54\ns_add_u32 s30, s27, 16896\nv_add_u32 v54, s30, v54')
    lsync(k, 1, 4, 'KG_S1')
    st(k, 1)
    for hf in range(2):
        for ks in range(4):
            o = 64 * hf + 16 * ks
            k('ds_read_b128 %s, v55 offset:%d\nds_read_b128 %s, v54 offset:%d\nds_read_b128 %s, v54 offset:%d', vr(56 + 12 * ks, 4), o, vr(60 + 12 * ks, 4), o, vr(64 + 12 * ks, 4), o + 8448)
        k('s_waitcnt lgkmcnt(0)')
        for ks in range(4):
            for jt in range(2): k('v_mfma_f32_16x16x32_bf16 %s, %s, %s, %s', vr(24 + 4 * jt, 4), vr(60 + 4 * jt + 12 * ks, 4), vr(56 + 12 * ks, 4), vr(24 + 4 * jt, 4) if (ks or hf) else '0')
    k('s_lshl_b32 s27, s28, 11\ns_lshl_b32 s30, s29, 10\ns_add_u32 s27, s27, s30\ns_add_u32 s27, s27, %d', TB)
    k('v_lshl_add_u32 v54, v52, 6, s27\nv_lshl_add_u32 v54, v53, 3, v54')
    for jt in range(2): k('v_cvt_pk_bf16_f32 v32, v%d, v%d\nv_cvt_pk_bf16_f32 v33, v%d, v%d\nds_write_b64 v54, v[32:33] offset:%d', 24 + 4 * jt, 25 + 4 * jt, 26 + 4 * jt, 27 + 4 * jt, 32 * jt)
    k('v_and_b32 v54, 3, v3\nv_mul_u32_u24 v54, 1280, v54\nv_lshrrev_b32 v55, 2, v3\nv_lshl_add_u32 v54, v55, 4, v54\nv_add_u32 v54, %d, v54', KB + 256)
    lsync(k, 2, 4, 'KG_S2')
    for c in range(2):
        for i in range(8): k('ds_read_u16 v%d, v%d offset:%d', 28 + i, 44 + i, 2048 * c)
        k('s_waitcnt lgkmcnt(0)')
        for a in range(4): k('v_lshl_or_b32 v%d, v%d, 16, v%d', 24 + a, 29 + 2 * a, 28 + 2 * a)
        k('ds_write_b128 v54, v[24:27] offset:%d', 5120 * c)
    k('s_lshr_b32 s27, s2, 3\ns_lshl_b32 s27, s27, 2\ns_add_u32 s27, s27, s3\ns_mul_i32 s27, s27, 14336\ns_and_b32 s30, s2, 3\ns_mul_i32 s30, s30, 896\ns_add_u32 s27, s27, s30')
    k('v_min_u32 v56, 55, v1\nv_lshl_add_u32 v56, v56, 4, s27\nv_add_u32 v57, 7168, v56')
    k('global_load_dwordx4 v[60:63], v56, s[56:57]\nglobal_load_dwordx4 v[64:67], v56, s[56:57] offset:3584\nglobal_load_dwordx4 v[68:71], v57, s[56:57]\nglobal_load_dwordx4 v[72:75], v57, s[56:57] offset:3584')
    k('KG_END:')
    k('s_and_b32 s28, s3, 3')
    k('v_sub_u32 v42, 7, v52\nv_and_b32 v42, 7, v42\nv_mul_u32_u24 v42, 4160, v42')
    k('v_sub_u32 v43, 2047, v52\nv_lshrrev_b32 v43, 3, v43\nv_add_u32 v43, v43, v53\nv_lshl_add_u32 v42, v43, 4, v42')
    k('s_mul_i32 s27, s25, 33280\ns_lshl_b32 s30, s28, 8\ns_sub_u32 s27, s27, s30\ns_add_u32 s27, s27, %d\nv_add_u32 v42, s27, v42', (HB - 192 - 3072 - 32) & 0xffffffff)
    k('v_mul_u32_u24 v43, 1280, v53\nv_lshl_add_u32 v43, v52, 4, v43')
    k('s_mul_i32 s27, s25, 5120\ns_lshl_b32 s30, s28, 6\ns_sub_u32 s27, s27, s30\ns_add_u32 s27, s27, %d\nv_add_u32 v43, s27, v43', KB + 256 - 48)
    k('s_lshl_b32 s26, s2, 1\ns_add_u32 s26, s26, s25')
    k('s_lshl_b32 s27, s26, 12\nv_lshl_add_u32 v6, v3, 4, s27\nv_lshlrev_b32 v7, 6, v3\nv_add_u32 v7, 0x%x, v7', STATS)
    k('s_lshl_b32 s27, s26, 2\ns_add_u32 s27, s27, 0x%x\nv_mov_b32 v8, s27', MOD + 2048)
    k('v_lshrrev_b32 v9, 5, v0\nv_bfe_u32 v10, v1, 3, 2\nv_lshlrev_b32 v11, 7, v9\nv_lshl_add_u32 v11, v10, 4, v11\nv_add_u32 v11, 0x%x, v11', MOD + 3 * 2048)
    k('s_mul_i32 s27, s25, 33280\ns_add_u32 s27, s27, %d\nv_lshlrev_b32 v41, 4, v3\nv_sub_u32 v41, s27, v41', HB + 4080)
def sync1(k):
    st(k, 2)
    k('v_lshrrev_b32 v232, 5, v0\nv_bfe_u32 v233, v1, 3, 2\nv_lshlrev_b32 v234, 5, v232\nv_lshl_add_u32 v234, v233, 2, v234')
    k('v_and_b32 v235, 7, v1\nv_mul_u32_u24 v236, 3584, v234\nv_lshl_add_u32 v236, v235, 2, v236\ns_lshl_b32 s28, s33, 5\nv_add_u32 v236, s28, v236')
    k('s_cmp_lg_u32 s3, 0\ns_cbranch_scc1 S1_W')
    tag_lds(k, 'S1_TAG')
    k('s_bfe_u32 s47, s2, 0x%x\ns_lshl_b32 s47, s47, 11\nv_lshl_add_u32 v187, v1, 4, s47\nv_add_u32 v187, 0x%x, v187', (RL << 16) | 3, FLG1)
    poll(k, 'S1_P', 187, 2, 64)
    k('S1_W:\ns_barrier')
    st(k, 3)
def conv(k):
    k('s_waitcnt vmcnt(0)')
    k('global_load_dwordx4 v[20:23], v6, s[4:5]')
    for i in range(4): k('global_load_dwordx4 %s, v7, s[4:5] offset:%d', vr(24 + 4 * i, 4), 16 * i)
    k('global_load_dword v17, v8, s[4:5] offset:-2048\nglobal_load_dword v18, v8, s[4:5]\nglobal_load_dword v19, v8, s[4:5] offset:2048')
    k('global_load_dwordx4 v[200:203], v11, s[4:5]\nglobal_load_dwordx4 v[204:207], v11, s[4:5] offset:64')
    k('global_load_dwordx4 v[208:211], v11, s[4:5] offset:2048\nglobal_load_dwordx4 v[212:215], v11, s[4:5] offset:2112')
    k('s_mul_i32 s27, s33, 0x2493\ns_lshr_b32 s27, s27, 16\ns_mul_i32 s28, s27, 7\ns_sub_u32 s28, s33, s28')
    k('s_mul_i32 s27, s27, 224\ns_mul_i32 s29, s32, 7\ns_add_u32 s27, s27, s29\ns_add_u32 s27, s27, s28\ns_lshl_b32 s27, s27, 10\ns_add_u32 s27, s27, 0x%x', WP)
    k('v_mul_u32_u24 v12, 14336, v9\nv_lshl_add_u32 v12, v10, 8, v12\nv_and_b32 v13, 7, v1\nv_lshl_add_u32 v12, v13, 4, v12\nv_add_u32 v12, s27, v12\ns_cmp_ge_u32 s2, 224\ns_cselect_b32 s27, 0x4000000, 0\nv_add_u32 v12, s27, v12')
    k('v_lshlrev_b32 v40, 16, v127\ns_waitcnt vmcnt(4)')
    k('v_add_f32 v18, 1.0, v18'); bfround(k, 18, 18)
    for a in range(4):
        h = 60 + 2 * a
        unpack(k, h, 20 + a)
        k('v_sub_f32 v%d, v%d, v%d\nv_sub_f32 v%d, v%d, v%d', h, h, 24 + 4 * a, h + 1, h + 1, 26 + 4 * a)
        k('v_mul_f32 v%d, v%d, v%d\nv_mul_f32 v%d, v%d, v%d', h, h, 25 + 4 * a, h + 1, h + 1, 27 + 4 * a)
        k('v_fma_f32 v%d, v%d, v18, v17\nv_fma_f32 v%d, v%d, v18, v17', h, h, h + 1, h + 1)
        k('v_cvt_pk_bf16_f32 v%d, v%d, v%d', 71 - a, h + 1, h)
    k('ds_write_b128 v41, v[68:71]\ns_waitcnt lgkmcnt(0)\ns_barrier')
    k('ds_read_b128 v[72:75], v41 offset:16')
    for a in range(4): k('v_and_b32 v%d, 0xffff0000, v%d\nv_lshlrev_b32 v%d, 16, v%d', 60 + 2 * a, 71 - a, 61 + 2 * a, 71 - a)
    for i in range(3): k('v_mov_b32 v%d, v%d\nv_alignbit_b32 v%d, v%d, v%d, 16', 76 + i, 69 + i, 82 + i, 69 + i, 68 + i)
    for i in range(2): k('v_alignbit_b32 v%d, v%d, v%d, 16', 88 + i, 70 + i, 69 + i)
    k('s_waitcnt lgkmcnt(0)')
    for i in range(3, 6): k('v_mov_b32 v%d, v%d\nv_alignbit_b32 v%d, v%d, v%d, 16', 76 + i, 69 + i, 82 + i, 69 + i, 68 + i)
    for i in range(2, 6): k('v_alignbit_b32 v%d, v%d, v%d, 16', 88 + i, 70 + i, 69 + i)
    for s_, r in ((4, 70), (1, 82), (2, 76), (3, 88), (5, 84), (6, 78), (7, 90)): k('ds_write_b128 v41, %s offset:%d', vr(r, 4), 4160 * s_)
    for i in range(8): k('v_add_u32 v237, %d, v236\nglobal_load_dword v%d, v237, s[56:57]', ((i & 3) + 16 * (i >> 2)) * 3584, 192 + i)
    k('s_waitcnt lgkmcnt(0)\ns_barrier')
    w = K()
    w('s_waitcnt vmcnt(0)')
    for i in range(8): w('v_add_f32 v%d, 1.0, v%d', 208 + i, 208 + i); bfround(w, 208 + i, 208 + i)
    for i in range(4): w('v_mov_b32 v%d, 0', 224 + i)
    for a in range(4):
        unpack(w, 228, 192 + 2 * a); unpack(w, 230, 193 + 2 * a)
        w('v_fmac_f32 v226, v228, v%d\nv_fmac_f32 v227, v229, v%d\nv_fmac_f32 v226, v230, v%d\nv_fmac_f32 v227, v231, v%d', 200 + 2 * a, 200 + 2 * a, 201 + 2 * a, 201 + 2 * a)
        w('v_mul_f32 v228, v228, v%d\nv_mul_f32 v229, v229, v%d\nv_mul_f32 v230, v230, v%d\nv_mul_f32 v231, v231, v%d', 208 + 2 * a, 208 + 2 * a, 209 + 2 * a, 209 + 2 * a)
        w('v_cvt_pk_bf16_f32 v%d, v228, v230\nv_cvt_pk_bf16_f32 v%d, v229, v231', 216 + a, 220 + a)
        for c in range(2):
            unpack(w, 228, 216 + 4 * c + a); w('v_add_f32 v%d, v%d, v228\nv_add_f32 v%d, v%d, v229', 224 + c, 224 + c, 224 + c, 224 + c)
    w('buffer_store_dwordx4 v[216:219], v12, s[36:39], 0 offen sc1\nbuffer_store_dwordx4 v[220:223], v12, s[36:39], 0 offen offset:128 sc1')
    w('v_permlane32_swap_b32 v224, v226\nv_permlane32_swap_b32 v225, v227\nv_add_f32 v224, v224, v226\nv_add_f32 v225, v225, v227')
    w('v_permlane16_swap_b32 v224, v225\nv_add_f32 v224, v224, v225')
    w('v_add_f32_dpp v224, v224, v224 row_ror:8 row_mask:0xf bank_mask:0xf')
    w('v_lshrrev_b32 v228, 5, v1\nv_lshlrev_b32 v228, 6, v228\nv_lshl_add_u32 v228, v13, 2, v228\nv_bfe_u32 v229, v1, 4, 1\nv_lshl_add_u32 v228, v229, 5, v228\ns_lshl_b32 s27, s3, 7\ns_add_u32 s27, s27, %d\nv_add_u32 v228, s27, v228', SPB)
    WJ = list(w.L)
    st(k, 4)
    ACC = 68; FB = [[100 + 4 * i for i in range(12)], [148, 152, 156, 160, 164, 24, 28, 32, 36, 44, 48, 56]]
    def reads(e):
        f = FB[e & 1]; L = []
        for u in range(4): L.append('ds_read_b128 %s, v43 offset:%d' % (vr(f[u], 4), 256 * u + 16 * (3 - e)))
        for j in range(4):
            for ct in range(2): L.append('ds_read_b128 %s, v42 offset:%d' % (vr(f[4 + 2 * j + ct], 4), 64 * (3 - e) + 1024 * (3 - j) + 32 * (1 - ct)))
        return L
    for l in reads(0): k(l)
    for e in range(4):
        k('s_waitcnt lgkmcnt(0)')
        nxt = reads(e + 1) if e < 3 else []
        f = FB[e & 1]
        for j in range(4):
            for R in range(j, 4):
                for ct in range(2):
                    a = ACC + 8 * R + 4 * ct
                    k('v_mfma_f32_16x16x32_bf16 %s, %s, %s, %s', vr(a, 4), vr(f[4 + 2 * j + ct], 4), vr(f[R - j], 4), '0' if (e == 0 and j == 0) else vr(a, 4))
                    if nxt: k(nxt.pop(0))
                    for _ in range(4 if e >= 1 else 0):
                        if WJ: k(WJ.pop(0))
    for l in WJ: k(l)
    k('ds_write_b32 v228, v224')
    st(k, 5)
    k('s_mul_i32 s27, s3, 9216\ns_add_u32 s27, s27, %d\nv_mul_u32_u24 v54, 144, v52\nv_lshl_add_u32 v54, v53, 4, v54\nv_add_u32 v54, s27, v54', UVB)
    for R in range(4):
        for ct in range(2): k('ds_write_b128 v54, %s offset:%d', vr(ACC + 8 * R + 4 * ct, 4), 2304 * R + 64 * ct)
    k('s_mul_i32 s27, s25, 36864\ns_add_u32 s27, s27, %d\nv_lshrrev_b32 v54, 2, v3\nv_mul_u32_u24 v54, 144, v54\nv_and_b32 v55, 3, v3\nv_lshl_add_u32 v54, v55, 5, v54\nv_add_u32 v54, s27, v54', UVB)
    k('s_waitcnt lgkmcnt(0)\ns_barrier')
    for p in range(4): k('ds_read_b128 %s, v54 offset:%d\nds_read_b128 %s, v54 offset:%d', vr(100 + 8 * p, 4), 9216 * p, vr(104 + 8 * p, 4), 9216 * p + 16)
    for a in range(4):
        h = 60 + 2 * a
        k('v_mul_f32 v%d, v%d, v40\nv_mul_f32 v%d, v%d, v40', h, h, h + 1, h + 1); round2(k, h, 58)
    k('s_cmp_lg_u32 s3, 7\ns_cbranch_scc1 C_NS\ns_cmp_ge_u32 s2, 224\ns_cbranch_scc1 C_NS')
    k('v_and_b32 v232, 31, v1\nv_lshlrev_b32 v233, 2, v232\nv_add_u32 v233, %d, v233', SPB)
    for w in range(8): k('ds_read_b32 v%d, v233 offset:%d', 236 + w, 128 * w)
    k('s_mul_i32 s27, s32, 14336\ns_lshl_b32 s28, s33, 6\ns_add_u32 s27, s27, s28\ns_add_u32 s27, s27, 0x%x', ST)
    k('v_lshrrev_b32 v233, 4, v232\nv_mul_u32_u24 v233, 7168, v233\nv_and_b32 v232, 15, v232\nv_lshl_add_u32 v233, v232, 2, v233\nv_add_u32 v233, s27, v233\ns_waitcnt lgkmcnt(0)')
    for w in range(1, 8): k('v_add_f32 v236, v236, v%d', 236 + w)
    k('global_store_dword v233, v236, s[4:5] sc1\nC_NS:')
    k('s_waitcnt lgkmcnt(0)')
    for i in range(8): k('v_add_f32 v%d, v%d, v%d\nv_add_f32 v%d, v%d, v%d\nv_add_f32 v%d, v%d, v%d', 100 + i, 100 + i, 108 + i, 116 + i, 116 + i, 124 + i, 100 + i, 100 + i, 116 + i)
    for a in range(4):
        y = 100 + 2 * a; h = 60 + 2 * a
        round2(k, y, 58)
        k('v_add_f32 v%d, v%d, v%d\nv_add_f32 v%d, v%d, v%d', y, y, h, y + 1, y + 1, h + 1); round2(k, y, 58)
        k('v_mul_f32 v%d, v%d, v19\nv_mul_f32 v%d, v%d, v19', y, y, y + 1, y + 1); round2(k, y, 58)
        unpack(k, h, 20 + a)
        k('v_add_f32 v%d, v%d, v%d\nv_add_f32 v%d, v%d, v%d\nv_cvt_pk_bf16_f32 v%d, v%d, v%d', y, y, h, y + 1, y + 1, h + 1, 24 + a, y, y + 1)
    k('v_add_u32 v6, 0x%x, v6\nglobal_store_dwordx4 v6, v[24:27], s[4:5] sc1', X1T)
    k('s_waitcnt vmcnt(0)\ns_barrier')
    st(k, 6)
    k('s_cmp_lg_u32 s3, 0\ns_cbranch_scc1 S2_W')
    signal(k, FLG2)
    k('v_lshl_add_u32 v187, v1, 4, s47\nv_add_u32 v187, 0x%x, v187', FLG2)
    poll(k, 'S2_P', 187, 2, 64, SLP0)
    k('S2_W:')
```

```python
from asmlib import *
from gen1 import *
from gen2 import cmul, cexp, unpack, round2, fhex, HB, KB, TB, UVB
FLG1, FLG2, FLG3 = 0x1330000, 0x1338000, 0x1328000
WSZ = 0x1340000
CNT = 163808
SC = ' sc1'
ST_V = (182, 183, 181)
DBGS = int(os.environ.get('DBGS', '0'))
def st(k, idx):
    if DBGS and idx in (0, 1, 2, 3, 4, 5, 6, 7, 8, 11, 12, 13, 14, 15):
        j = 2 + (0, 1, 2, 3, 4, 5, 6, 7, 8, 11, 12, 13, 14, 15).index(idx)
        st.n = getattr(st, 'n', 0) + 1
        k('s_cmp_lg_u32 s2, 70\ns_cbranch_scc1 DS%d\ns_cmp_lg_u32 s3, 0\ns_cbranch_scc1 DS%d\ns_memrealtime s[60:61]\nv_mov_b32 v181, %d\ns_waitcnt lgkmcnt(0)\nv_mov_b32 v182, s60\nglobal_store_dword v181, v182, s[6:7]\nDS%d:', st.n, st.n, 4 * j, st.n)
    stamp(k, 0, idx, vt=ST_V)
    if idx == 0: stamp(k, 2, 0, vt=ST_V, ins='s_getreg_b32 s60, hwreg(HW_REG_XCC_ID)\ns_getreg_b32 s61, hwreg(HW_REG_HW_ID)\n;')
    stamp(k, 1, idx, vt=ST_V, ins='s_memtime')
SLP = int(os.environ.get('SLP', '6')); SLP0 = int(os.environ.get('SLP0', '8'))
def get_tag(k, lab):
    k('v_mov_b32 v176, s35\ns_mov_b32 s42, 0\n%s:\nglobal_load_dwordx2 v[178:179], v176, s[6:7] sc1\ns_waitcnt vmcnt(0)', lab)
    k('v_readfirstlane_b32 s40, v178\nv_readfirstlane_b32 s41, v179\ns_add_u32 s42, s42, 1\ns_cmp_gt_u32 s42, 0x40000\ns_cbranch_scc1 %s_D', lab)
    k('s_cmp_lg_u32 s40, 0\ns_cbranch_scc1 %s_D\ns_sleep 8\ns_branch %s\n%s_D:\nv_or_b32 v178, 1, v178', lab, lab, lab)
def tag_publish(k, lab):
    get_tag(k, lab)
    k('v_mov_b32 v176, %d\nds_write_b64 v176, v[178:179]', CNT + 16)
def tag_lds(k, lab):
    k('v_mov_b32 v176, %d\n%s:\nds_read_b64 v[178:179], v176\ns_waitcnt lgkmcnt(0)\nv_readfirstlane_b32 s40, v178\nv_readfirstlane_b32 s41, v179\ns_cmp_lg_u32 s40, 0\ns_cbranch_scc1 %s_D\ns_sleep 2\ns_branch %s\n%s_D:', CNT + 16, lab, lab, lab, lab)
def signal(k, base, R=16):
    k('s_add_u32 s43, s46, 0x%x\nv_lshl_add_u32 v176, v1, 11, s43\nv_mov_b32 v178, s40\nv_mov_b32 v179, s41\ns_mov_b64 exec, 0x%x', base, (1 << R) - 1)
    k('global_store_dwordx2 v176, v[178:179], s[4:5] sc1\ns_mov_b64 exec, -1')
def poll(k, lab, base_v, nld, nl, slp0=0):
    k('s_mov_b32 s42, 0\ns_mov_b64 exec, %s', '-1' if nl == 64 else hex((1 << nl) - 1))
    if slp0: k('s_sleep %d', slp0)
    k('%s:', lab)
    for i in range(nld): k('global_load_dwordx4 %s, v%d, s[4:5] offset:%d sc1', vr(176 + 4 * i, 4), base_v, 1024 * i)
    k('s_waitcnt vmcnt(0)')
    for i in range(nld):
        for j in range(4): k('v_xor_b32 v%d, s%d, v%d', 176 + 4 * i + j, 40 + (j & 1), 176 + 4 * i + j)
    for i in range(1, 4 * nld): k('v_or_b32 v176, v176, v%d', 176 + i)
    k('v_cmp_ne_u32 vcc, 0, v176\ns_add_u32 s42, s42, 1\ns_cmp_gt_u32 s42, 0x40000\ns_cbranch_scc1 %s_D', lab)
    k('s_nop 2\ns_cbranch_vccz %s_D\ns_sleep %d\ns_branch %s\n%s_D:\ns_mov_b64 exec, -1', lab, SLP if nl == 64 else 3, lab, lab)
def roles(k):
    k('s_cmp_lt_u32 s3, 4\ns_cbranch_scc1 R_END\ns_and_b32 s26, s2, 3\nv_mov_b32 v2, s26\ns_lshr_b32 s31, s2, 2')
    k('s_cmp_eq_u32 s3, 7\ns_cbranch_scc1 R_W2\ns_cmp_eq_u32 s3, 5\ns_cbranch_scc1 R_S\ns_cmp_eq_u32 s3, 6\ns_cbranch_scc1 R_MOD')
    k('s_mov_b64 s[24:25], s[64:65]')
    k('v_and_b32 v7, 3, v1\nv_lshrrev_b32 v8, 2, v1\nv_lshl_add_u32 v8, v2, 4, v8\ns_lshl_b32 s26, s31, 5\nv_lshl_add_u32 v3, v7, 3, s26')
    k('v_lshlrev_b32 v4, 10, v3\nv_lshl_add_u32 v4, v8, 4, v4\nv_add_u32 v5, 0x1000, v4')
    for i in range(8): k('global_load_dwordx4 %s, v%d, s[24:25] offset:%d', vr(16 + 4 * i, 4), 4 if i < 4 else 5, (i & 3) * 1024)
    k('v_lshlrev_b32 v6, 15, v8\nv_lshl_add_u32 v6, v3, 1, v6\ns_waitcnt vmcnt(0)')
    transpose8(k, 16, 48, 20, 21)
    for j in range(8): k('s_mov_b32 s26, %d\nbuffer_store_dwordx4 %s, v6, s[36:39], s26 offen sc1', XT + j * 4096, vr(48 + 4 * j, 4))
    k('s_branch R_SIG')
    k('R_S:')
    k('s_mov_b64 s[24:25], s[64:65]')
    k('s_lshl_b32 s26, s31, 5\nv_lshl_add_u32 v3, v2, 3, s26\nv_lshlrev_b32 v4, 10, v3\nv_lshl_add_u32 v4, v1, 4, v4\nv_add_u32 v5, 0x1000, v4')
    for i in range(8): k('global_load_dwordx4 %s, v%d, s[24:25] offset:%d', vr(16 + 4 * i, 4), 4 if i < 4 else 5, (i & 3) * 1024)
    for i in range(16): k('v_mov_b32 v%d, 0', 80 + i)
    for i in range(8):
        k('s_waitcnt vmcnt(%d)', 7 - i)
        for a in range(4):
            k('v_dot2_f32_bf16 v%d, v%d, s22, v%d', 80 + i, 16 + 4 * i + a, 80 + i)
            k('v_dot2_f32_bf16 v%d, v%d, v%d, v%d', 88 + i, 16 + 4 * i + a, 16 + 4 * i + a, 88 + i)
    for b in (80, 88):
        for i in range(4): k('v_permlane32_swap_b32 v%d, v%d', b + i, b + i + 4)
        for i in range(4): k('v_add_f32 v%d, v%d, v%d', b + i, b + i, b + i + 4)
        for i in range(2): k('v_permlane16_swap_b32 v%d, v%d', b + i, b + i + 2)
        for i in range(2): k('v_add_f32 v%d, v%d, v%d', b + i, b + i, b + i + 2)
    rowsum16(k, [80, 81, 88, 89])
    lnstats(k, 80, 88, 96, 97, 100); lnstats(k, 81, 89, 98, 99, 101)
    k('v_lshrrev_b32 v7, 4, v1\nv_lshl_add_u32 v7, v7, 1, v3\nv_lshlrev_b32 v7, 3, v7\ns_mov_b32 s26, 0x%x', STATS)
    k('v_and_b32 v8, 15, v1\nv_cmp_eq_u32 vcc, 0, v8\ns_and_saveexec_b64 s[44:45], vcc')
    k('buffer_store_dwordx4 v[96:99], v7, s[36:39], s26 offen sc1\ns_mov_b64 exec, s[44:45]\ns_branch R_SIG')
    k('R_MOD:\ns_cmp_ge_u32 s2, 192\ns_cbranch_scc1 R_SIG')
    k('s_mov_b64 s[24:25], s[58:59]\ns_mov_b64 s[26:27], s[70:71]')
    k('s_and_b32 s28, s2, 7\ns_mul_i32 s28, s28, 24\ns_lshr_b32 s29, s2, 3\ns_add_u32 s28, s28, s29')
    k('v_lshrrev_b32 v3, 1, v1\nv_and_b32 v4, 1, v1\nv_lshlrev_b32 v5, 5, v3')
    k('global_load_dwordx4 v[8:11], v5, s[26:27]\nglobal_load_dwordx4 v[12:15], v5, s[26:27] offset:16')
    k('s_mov_b32 s29, %d\nv_mul_lo_u32 v5, v3, s29\nv_lshl_add_u32 v5, v4, 4, v5\ns_lshl_b32 s29, s28, 5\nv_add_u32 v5, s29, v5', 16 * 6144)
    k('s_waitcnt vmcnt(0)')
    for i in range(16): k('global_load_dwordx4 %s, v5, s[24:25]\nv_add_u32 v5, 6144, v5', vr(32 + 4 * i, 4))
    for i in range(8): unpack(k, 16 + 2 * i, 8 + i)
    for i in range(16):
        k('v_mul_f32 v100, 0xbfb8aa3b, v%d\nv_exp_f32 v100, v100\nv_add_f32 v100, 1.0, v100\nv_rcp_f32 v100, v100\nv_mul_f32 v%d, v%d, v100', 16 + i, 16 + i, 16 + i)
        bfround(k, 16 + i, 16 + i)
    for j in range(8): k('v_mov_b32 v%d, 0', 104 + j)
    for i in range(16):
        k('s_waitcnt vmcnt(%d)', 15 - i)
        for a in range(4):
            unpack(k, 100, 32 + 4 * i + a)
            k('v_pk_fma_f32 %s, v[100:101], %s, %s op_sel:[0,%d,0] op_sel_hi:[1,%d,1]', vr(104 + 2 * a, 2), vr(16 + (i & ~1), 2), vr(104 + 2 * a, 2), i & 1, i & 1)
    for i in range(4): k('v_permlane32_swap_b32 v%d, v%d', 104 + i, 108 + i)
    for i in range(4): k('v_add_f32 v%d, v%d, v%d', 104 + i, 104 + i, 108 + i)
    for i in range(2): k('v_permlane16_swap_b32 v%d, v%d', 104 + i, 106 + i)
    for i in range(2): k('v_add_f32 v%d, v%d, v%d', 104 + i, 104 + i, 106 + i)
    for mode in ('row_ror:8', 'row_ror:4', 'row_ror:2'):
        for i in range(2): k('v_add_f32_dpp v%d, v%d, v%d %s row_mask:0xf bank_mask:0xf', 104 + i, 104 + i, 104 + i, mode)
    bfround(k, 104, 104); bfround(k, 105, 105)
    k('v_lshrrev_b32 v6, 4, v1\nv_lshlrev_b32 v6, 3, v6\nv_lshl_add_u32 v6, v4, 5, v6\ns_lshl_b32 s29, s28, 6\ns_add_u32 s29, s29, 0x%x', MOD)
    k('v_and_b32 v8, 14, v1\nv_cmp_eq_u32 vcc, 0, v8\ns_and_saveexec_b64 s[44:45], vcc')
    k('buffer_store_dwordx2 v[104:105], v6, s[36:39], s29 offen sc1\ns_mov_b64 exec, s[44:45]')
    k('R_SIG:')
    k('s_waitcnt vmcnt(0)')
    k('v_mov_b32 v8, %d\nv_mov_b32 v9, 1\ns_mov_b64 s[44:45], exec\ns_mov_b64 exec, 1\nds_add_rtn_u32 v9, v8, v9\ns_waitcnt lgkmcnt(0)\ns_mov_b64 exec, s[44:45]', CNT)
    k('v_readfirstlane_b32 s26, v9\ns_cmp_lg_u32 s26, 2\ns_cbranch_scc1 R_END')
    tag_lds(k, 'R_TAG'); signal(k, FLG1)
    k('s_branch R_END')
    k('R_W2:\ns_mov_b32 s40, 0\ns_cmp_ge_u32 s2, 224\ns_cbranch_scc1 R_W2T')
    k('s_mov_b64 s[24:25], s[68:69]')
    k('s_mov_b32 s28, s31\ns_mul_i32 s29, s28, 0x5556\ns_lshr_b32 s29, s29, 16\ns_lshl_b32 s30, s28, 1\ns_add_u32 s29, s29, s30\ns_mov_b32 s30, 1')
    k('s_cmp_lt_u32 s28, 48\ns_cbranch_scc1 R_W2a\ns_sub_u32 s29, s28, 48\ns_mul_i32 s29, s29, 14\ns_add_u32 s29, s29, 6\ns_mov_b32 s30, 7\nR_W2a:')
    k('s_lshl_b32 s29, s29, 14\ns_lshl_b32 s30, s30, 14')
    k('v_and_b32 v4, 1, v2\nv_lshlrev_b32 v4, 13, v4\nv_lshrrev_b32 v5, 1, v2\nv_lshl_add_u32 v4, v5, 10, v4\nv_lshl_add_u32 v4, v1, 4, v4\nv_add_u32 v4, s29, v4')
    k('v_add_u32 v5, 0x1000, v4\nv_add_u32 v6, s30, v4\nv_add_u32 v7, s30, v5')
    for i in range(8): k('global_load_dwordx4 %s, v%d, s[24:25] offset:%d', vr(16 + 4 * i, 4), 4 + (i >> 1), (i & 1) * 2048)
    k('v_mov_b32 v8, 0\nv_lshrrev_b32 v9, 5, v1\nv_mul_u32_u24 v9, 4160, v9\nv_add_u32 v9, v9, v8')
    k('v_bfe_u32 v10, v1, 3, 2\nv_lshl_add_u32 v9, v10, 10, v9\nv_and_b32 v10, 1, v1\nv_lshl_add_u32 v9, v10, 9, v9\nv_bfe_u32 v10, v1, 1, 2\nv_lshl_add_u32 v9, v10, 6, v9')
    k('v_lshl_add_u32 v8, v1, 4, v8')
    k('v_lshrrev_b32 v6, 4, v1\nv_lshlrev_b32 v6, 10, v6\nv_and_b32 v7, 15, v1\nv_lshl_add_u32 v6, v7, 4, v6\nv_lshl_add_u32 v6, v2, 8, v6')
    k('s_lshl_b32 s29, s28, 12\ns_add_u32 s29, s29, 0x%x\ns_waitcnt vmcnt(0)', W2F)
    k('v_mov_b32 v176, s35\nglobal_load_dwordx2 v[178:179], v176, s[6:7] sc1')
    transpose8(k, 16, 48, 20, 21)
    for j in range(8): k('ds_write_b128 v9, %s offset:%d', vr(48 + 4 * j, 4), (j >> 2) * 256 + (j & 3) * 16)
    k('s_waitcnt lgkmcnt(0)')
    k('s_waitcnt vmcnt(0)\nv_readfirstlane_b32 s40, v178\nv_mov_b32 v176, %d\nds_write_b64 v176, v[178:179]', CNT + 16)
    for j in range(8): k('ds_read_b128 %s, v8 offset:%d', vr(16 + 4 * j, 4), (j >> 2) * 4160 + (j & 3) * 1024)
    for j in range(8): k('s_waitcnt lgkmcnt(%d)\nbuffer_store_dwordx4 %s, v6, s[36:39], s29 offen sc1\ns_add_u32 s29, s29, %d', 7 - j, vr(16 + 4 * j, 4), 56 * 4096)
    k('R_W2T:\ns_cmp_lg_u32 s40, 0\ns_cbranch_scc1 R_END\ns_cmp_lt_u32 s2, 224\ns_cbranch_scc1 R_W2U\ns_sleep 64\nR_W2U:')
    tag_publish(k, 'R_TG')
    k('R_END:')

def lsync(k, idx, target, lab):
    k('s_waitcnt lgkmcnt(0)\nv_mov_b32 v180, %d\nv_mov_b32 v181, 1\ns_mov_b64 exec, 1\nds_add_u32 v180, v181\ns_mov_b64 exec, -1\n%s:', CNT + 4 * idx, lab)
    k('s_sleep 1\nds_read_b32 v181, v180\ns_waitcnt lgkmcnt(0)\nv_readfirstlane_b32 s43, v181\ns_cmp_lt_u32 s43, %d\ns_cbranch_scc1 %s', target, lab)
```

```python
from asmlib import *
from gen1 import *
from gen2 import cmul, cexp, unpack, round2, fhex, HB, KB, TB, UVB
FLG1, FLG2, FLG3 = 0x1330000, 0x1338000, 0x1328000
WSZ = 0x1340000
CNT = 163808
SC = ' sc1'
ST_V = (182, 183, 181)
DBGS = int(os.environ.get('DBGS', '0'))
def st(k, idx):
    if DBGS and idx in (0, 1, 2, 3, 4, 5, 6, 7, 8, 11, 12, 13, 14, 15):
        j = 2 + (0, 1, 2, 3, 4, 5, 6, 7, 8, 11, 12, 13, 14, 15).index(idx)
        st.n = getattr(st, 'n', 0) + 1
        k('s_cmp_lg_u32 s2, 70\ns_cbranch_scc1 DS%d\ns_cmp_lg_u32 s3, 0\ns_cbranch_scc1 DS%d\ns_memrealtime s[60:61]\nv_mov_b32 v181, %d\ns_waitcnt lgkmcnt(0)\nv_mov_b32 v182, s60\nglobal_store_dword v181, v182, s[6:7]\nDS%d:', st.n, st.n, 4 * j, st.n)
    stamp(k, 0, idx, vt=ST_V)
    if idx == 0: stamp(k, 2, 0, vt=ST_V, ins='s_getreg_b32 s60, hwreg(HW_REG_XCC_ID)\ns_getreg_b32 s61, hwreg(HW_REG_HW_ID)\n;')
    stamp(k, 1, idx, vt=ST_V, ins='s_memtime')
SLP = int(os.environ.get('SLP', '6')); SLP0 = int(os.environ.get('SLP0', '0'))
def get_tag(k, lab):
    k('v_mov_b32 v176, s35\ns_mov_b32 s42, 0\n%s:\nglobal_load_dwordx2 v[178:179], v176, s[6:7] sc1\ns_waitcnt vmcnt(0)', lab)
    k('v_readfirstlane_b32 s40, v178\nv_readfirstlane_b32 s41, v179\ns_add_u32 s42, s42, 1\ns_cmp_gt_u32 s42, 0x40000\ns_cbranch_scc1 %s_D', lab)
    k('s_cmp_lg_u32 s40, 0\ns_cbranch_scc1 %s_D\ns_sleep 8\ns_branch %s\n%s_D:\nv_or_b32 v178, 1, v178', lab, lab, lab)
def tag_publish(k, lab):
    get_tag(k, lab)
    k('v_mov_b32 v176, %d\nds_write_b64 v176, v[178:179]', CNT + 16)
def tag_lds(k, lab):
    k('v_mov_b32 v176, %d\n%s:\nds_read_b64 v[178:179], v176\ns_waitcnt lgkmcnt(0)\nv_readfirstlane_b32 s40, v178\nv_readfirstlane_b32 s41, v179\ns_cmp_lg_u32 s40, 0\ns_cbranch_scc1 %s_D\ns_sleep 2\ns_branch %s\n%s_D:', CNT + 16, lab, lab, lab, lab)
RL = int(os.environ.get('RL', '4'))
def signal(k, base, R=1 << RL):
    k('s_add_u32 s43, s46, 0x%x\nv_lshl_add_u32 v176, v1, 11, s43\nv_mov_b32 v178, s40\nv_mov_b32 v179, s41\ns_mov_b64 exec, 0x%x', base, (1 << R) - 1)
    k('global_store_dwordx2 v176, v[178:179], s[4:5] sc1\ns_mov_b64 exec, -1')
def poll(k, lab, base_v, nld, nl, slp0=0):
    k('s_mov_b32 s42, 0\ns_mov_b64 exec, %s', '-1' if nl == 64 else hex((1 << nl) - 1))
    if slp0: k('s_sleep %d', slp0)
    k('%s:', lab)
    for i in range(nld): k('global_load_dwordx4 %s, v%d, s[4:5] offset:%d sc1', vr(176 + 4 * i, 4), base_v, 1024 * i)
    k('s_waitcnt vmcnt(0)')
    for i in range(nld):
        for j in range(4): k('v_xor_b32 v%d, s%d, v%d', 176 + 4 * i + j, 40 + (j & 1), 176 + 4 * i + j)
    for i in range(1, 4 * nld): k('v_or_b32 v176, v176, v%d', 176 + i)
    k('v_cmp_ne_u32 vcc, 0, v176\ns_add_u32 s42, s42, 1\ns_cmp_gt_u32 s42, 0x40000\ns_cbranch_scc1 %s_D', lab)
    k('s_nop 2\ns_cbranch_vccz %s_D\ns_sleep %d\ns_branch %s\n%s_D:\ns_mov_b64 exec, -1', lab, SLP if nl == 64 else 3, lab, lab)
def roles(k):
    k('s_cmp_lt_u32 s3, 4\ns_cbranch_scc1 R_END\ns_and_b32 s26, s2, 3\nv_mov_b32 v2, s26\ns_lshr_b32 s31, s2, 2')
    k('s_cmp_eq_u32 s3, 7\ns_cbranch_scc1 R_W2\ns_cmp_eq_u32 s3, 5\ns_cbranch_scc1 R_S\ns_cmp_eq_u32 s3, 6\ns_cbranch_scc1 R_MOD')
    k('s_mov_b64 s[24:25], s[64:65]')
    k('v_and_b32 v7, 3, v1\nv_lshrrev_b32 v8, 2, v1\nv_lshl_add_u32 v8, v2, 4, v8\ns_lshl_b32 s26, s31, 5\nv_lshl_add_u32 v3, v7, 3, s26')
    k('v_lshlrev_b32 v4, 10, v3\nv_lshl_add_u32 v4, v8, 4, v4\nv_add_u32 v5, 0x1000, v4')
    for i in range(8): k('global_load_dwordx4 %s, v%d, s[24:25] offset:%d', vr(16 + 4 * i, 4), 4 if i < 4 else 5, (i & 3) * 1024)
    k('v_lshlrev_b32 v6, 15, v8\nv_lshl_add_u32 v6, v3, 1, v6\ns_waitcnt vmcnt(0)')
    transpose8(k, 16, 48, 20, 21)
    for j in range(8): k('s_mov_b32 s26, %d\nbuffer_store_dwordx4 %s, v6, s[36:39], s26 offen sc1', XT + j * 4096, vr(48 + 4 * j, 4))
    k('s_branch R_SIG')
    k('R_S:')
    k('s_mov_b64 s[24:25], s[64:65]')
    k('s_lshl_b32 s26, s31, 5\nv_lshl_add_u32 v3, v2, 3, s26\nv_lshlrev_b32 v4, 10, v3\nv_lshl_add_u32 v4, v1, 4, v4\nv_add_u32 v5, 0x1000, v4')
    for i in range(8): k('global_load_dwordx4 %s, v%d, s[24:25] offset:%d', vr(16 + 4 * i, 4), 4 if i < 4 else 5, (i & 3) * 1024)
    for i in range(16): k('v_mov_b32 v%d, 0', 80 + i)
    for i in range(8):
        k('s_waitcnt vmcnt(%d)', 7 - i)
        for a in range(4):
            k('v_dot2_f32_bf16 v%d, v%d, s22, v%d', 80 + i, 16 + 4 * i + a, 80 + i)
            k('v_dot2_f32_bf16 v%d, v%d, v%d, v%d', 88 + i, 16 + 4 * i + a, 16 + 4 * i + a, 88 + i)
    for b in (80, 88):
        for i in range(4): k('v_permlane32_swap_b32 v%d, v%d', b + i, b + i + 4)
        for i in range(4): k('v_add_f32 v%d, v%d, v%d', b + i, b + i, b + i + 4)
        for i in range(2): k('v_permlane16_swap_b32 v%d, v%d', b + i, b + i + 2)
        for i in range(2): k('v_add_f32 v%d, v%d, v%d', b + i, b + i, b + i + 2)
    rowsum16(k, [80, 81, 88, 89])
    lnstats(k, 80, 88, 96, 97, 100); lnstats(k, 81, 89, 98, 99, 101)
    k('v_lshrrev_b32 v7, 4, v1\nv_lshl_add_u32 v7, v7, 1, v3\nv_lshlrev_b32 v7, 3, v7\ns_mov_b32 s26, 0x%x', STATS)
    k('v_and_b32 v8, 15, v1\nv_cmp_eq_u32 vcc, 0, v8\ns_and_saveexec_b64 s[44:45], vcc')
    k('buffer_store_dwordx4 v[96:99], v7, s[36:39], s26 offen sc1\ns_mov_b64 exec, s[44:45]\ns_branch R_SIG')
    k('R_MOD:\ns_cmp_ge_u32 s2, 192\ns_cbranch_scc1 R_SIG')
    k('s_mov_b64 s[24:25], s[58:59]\ns_mov_b64 s[26:27], s[70:71]')
    k('s_and_b32 s28, s2, 7\ns_mul_i32 s28, s28, 24\ns_lshr_b32 s29, s2, 3\ns_add_u32 s28, s28, s29')
    k('v_lshrrev_b32 v3, 1, v1\nv_and_b32 v4, 1, v1\nv_lshlrev_b32 v5, 4, v1')
    k('global_load_dwordx4 v[8:11], v5, s[26:27]')
    k('v_mul_u32_u24 v5, 6144, v3\nv_lshl_add_u32 v5, v4, 4, v5\ns_lshl_b32 s29, s28, 5\nv_add_u32 v5, s29, v5')
    k('v_lshlrev_b32 v6, 5, v1\nv_add_u32 v6, 155648, v6\nv_lshlrev_b32 v7, 2, v3\nv_add_u32 v7, 155648, v7')
    k('s_waitcnt vmcnt(0)')
    for i in range(4): unpack(k, 16 + 2 * i, 8 + i)
    for i in range(8):
        k('v_mul_f32 v100, 0xbfb8aa3b, v%d\nv_exp_f32 v100, v100\nv_add_f32 v100, 1.0, v100\nv_rcp_f32 v100, v100\nv_mul_f32 v%d, v%d, v100', 16 + i, 16 + i, 16 + i)
        bfround(k, 16 + i, 16 + i)
    k('ds_write_b128 v6, v[16:19]\nds_write_b128 v6, v[20:23] offset:16\ns_waitcnt lgkmcnt(0)')
    for i in range(16): k('global_load_dwordx4 %s, v5, s[24:25]\nv_add_u32 v5, 0x30000, v5', vr(32 + 4 * i, 4))
    for i in range(16):
        k('ds_read_b32 v%d, v7 offset:%d', 16 + i, 128 * i)
        if i == 7: k('s_waitcnt lgkmcnt(0)')
    k('s_waitcnt lgkmcnt(0)')
    for j in range(8): k('v_mov_b32 v%d, 0', 104 + j)
    for i in range(16):
        k('s_waitcnt vmcnt(%d)', 15 - i)
        for a in range(4):
            unpack(k, 100, 32 + 4 * i + a)
            k('v_pk_fma_f32 %s, v[100:101], %s, %s op_sel:[0,%d,0] op_sel_hi:[1,%d,1]', vr(104 + 2 * a, 2), vr(16 + (i & ~1), 2), vr(104 + 2 * a, 2), i & 1, i & 1)
    for i in range(4): k('v_permlane32_swap_b32 v%d, v%d', 104 + i, 108 + i)
    for i in range(4): k('v_add_f32 v%d, v%d, v%d', 104 + i, 104 + i, 108 + i)
    for i in range(2): k('v_permlane16_swap_b32 v%d, v%d', 104 + i, 106 + i)
    for i in range(2): k('v_add_f32 v%d, v%d, v%d', 104 + i, 104 + i, 106 + i)
    for mode in ('row_ror:8', 'row_ror:4', 'row_ror:2'):
        for i in range(2): k('v_add_f32_dpp v%d, v%d, v%d %s row_mask:0xf bank_mask:0xf', 104 + i, 104 + i, 104 + i, mode)
    bfround(k, 104, 104); bfround(k, 105, 105)
    k('v_lshrrev_b32 v6, 4, v1\nv_lshlrev_b32 v6, 3, v6\nv_lshl_add_u32 v6, v4, 5, v6\ns_lshl_b32 s29, s28, 6\ns_add_u32 s29, s29, 0x%x', MOD)
    k('v_and_b32 v8, 14, v1\nv_cmp_eq_u32 vcc, 0, v8\ns_and_saveexec_b64 s[44:45], vcc')
    k('buffer_store_dwordx2 v[104:105], v6, s[36:39], s29 offen sc1\ns_mov_b64 exec, s[44:45]')
    k('R_SIG:')
    k('s_waitcnt vmcnt(0)')
    k('v_mov_b32 v8, %d\nv_mov_b32 v9, 1\ns_mov_b64 s[44:45], exec\ns_mov_b64 exec, 1\nds_add_rtn_u32 v9, v8, v9\ns_waitcnt lgkmcnt(0)\ns_mov_b64 exec, s[44:45]', CNT)
    k('v_readfirstlane_b32 s26, v9\ns_cmp_lg_u32 s26, 2\ns_cbranch_scc1 R_END')
    tag_lds(k, 'R_TAG'); signal(k, FLG1)
    k('s_branch R_END')
    k('R_W2:\ns_mov_b32 s40, 0\ns_cmp_ge_u32 s2, 224\ns_cbranch_scc1 R_W2T')
    k('s_mov_b64 s[24:25], s[68:69]')
    k('s_mov_b32 s28, s31\ns_mul_i32 s29, s28, 0x5556\ns_lshr_b32 s29, s29, 16\ns_lshl_b32 s30, s28, 1\ns_add_u32 s29, s29, s30\ns_mov_b32 s30, 1')
    k('s_cmp_lt_u32 s28, 48\ns_cbranch_scc1 R_W2a\ns_sub_u32 s29, s28, 48\ns_mul_i32 s29, s29, 14\ns_add_u32 s29, s29, 6\ns_mov_b32 s30, 7\nR_W2a:')
    k('s_lshl_b32 s29, s29, 14\ns_lshl_b32 s30, s30, 14')
    k('v_and_b32 v4, 1, v2\nv_lshlrev_b32 v4, 13, v4\nv_lshrrev_b32 v5, 1, v2\nv_lshl_add_u32 v4, v5, 10, v4\nv_lshl_add_u32 v4, v1, 4, v4\nv_add_u32 v4, s29, v4')
    k('v_add_u32 v5, 0x1000, v4\nv_add_u32 v6, s30, v4\nv_add_u32 v7, s30, v5')
    for i in range(8): k('global_load_dwordx4 %s, v%d, s[24:25] offset:%d', vr(16 + 4 * i, 4), 4 + (i >> 1), (i & 1) * 2048)
    k('v_mov_b32 v8, 0\nv_lshrrev_b32 v9, 5, v1\nv_mul_u32_u24 v9, 4160, v9\nv_add_u32 v9, v9, v8')
    k('v_bfe_u32 v10, v1, 3, 2\nv_lshl_add_u32 v9, v10, 10, v9\nv_and_b32 v10, 1, v1\nv_lshl_add_u32 v9, v10, 9, v9\nv_bfe_u32 v10, v1, 1, 2\nv_lshl_add_u32 v9, v10, 6, v9')
    k('v_lshl_add_u32 v8, v1, 4, v8')
    k('v_lshrrev_b32 v6, 4, v1\nv_lshlrev_b32 v6, 10, v6\nv_and_b32 v7, 15, v1\nv_lshl_add_u32 v6, v7, 4, v6\nv_lshl_add_u32 v6, v2, 8, v6')
    k('s_lshl_b32 s29, s28, 12\ns_add_u32 s29, s29, 0x%x\ns_waitcnt vmcnt(0)', W2F)
    k('v_mov_b32 v176, s35\nglobal_load_dwordx2 v[178:179], v176, s[6:7] sc1')
    transpose8(k, 16, 48, 20, 21)
    for j in range(8): k('ds_write_b128 v9, %s offset:%d', vr(48 + 4 * j, 4), (j >> 2) * 256 + (j & 3) * 16)
    k('s_waitcnt lgkmcnt(0)')
    k('s_waitcnt vmcnt(0)\nv_readfirstlane_b32 s40, v178\nv_mov_b32 v176, %d\nds_write_b64 v176, v[178:179]', CNT + 16)
    for j in range(8): k('ds_read_b128 %s, v8 offset:%d', vr(16 + 4 * j, 4), (j >> 2) * 4160 + (j & 3) * 1024)
    for j in range(8): k('s_waitcnt lgkmcnt(%d)\nbuffer_store_dwordx4 %s, v6, s[36:39], s29 offen sc1\ns_add_u32 s29, s29, %d', 7 - j, vr(16 + 4 * j, 4), 56 * 4096)
    k('R_W2T:\ns_cmp_lg_u32 s40, 0\ns_cbranch_scc1 R_END')
    tag_publish(k, 'R_TG')
    k('R_END:')

def lsync(k, idx, target, lab):
    k('s_waitcnt lgkmcnt(0)\nv_mov_b32 v180, %d\nv_mov_b32 v181, 1\ns_mov_b64 exec, 1\nds_add_u32 v180, v181\ns_mov_b64 exec, -1\n%s:', CNT + 4 * idx, lab)
    k('s_sleep 1\nds_read_b32 v181, v180\ns_waitcnt lgkmcnt(0)\nv_readfirstlane_b32 s43, v181\ns_cmp_lt_u32 s43, %d\ns_cbranch_scc1 %s', target, lab)
```

```python
from asmlib import *
from gen1 import *
from gen2 import cmul, cexp, unpack, round2, fhex, HB, KB, TB, UVB
FLG1, FLG2, FLG3 = 0x1330000, 0x1338000, 0x1328000
WSZ = 0x1340000
CNT = 163808
SC = ' sc1'
ST_V = (182, 183, 181)
DBGS = int(os.environ.get('DBGS', '0'))
def st(k, idx):
    if DBGS and idx in (0, 1, 2, 3, 4, 5, 6, 7, 8, 11, 12, 13, 14, 15):
        j = 2 + (0, 1, 2, 3, 4, 5, 6, 7, 8, 11, 12, 13, 14, 15).index(idx)
        st.n = getattr(st, 'n', 0) + 1
        k('s_cmp_lg_u32 s2, 70\ns_cbranch_scc1 DS%d\ns_cmp_lg_u32 s3, 0\ns_cbranch_scc1 DS%d\ns_memrealtime s[60:61]\nv_mov_b32 v181, %d\ns_waitcnt lgkmcnt(0)\nv_mov_b32 v182, s60\nglobal_store_dword v181, v182, s[6:7]\nDS%d:', st.n, st.n, 4 * j, st.n)
    stamp(k, 0, idx, vt=ST_V)
    if idx == 0: stamp(k, 2, 0, vt=ST_V, ins='s_getreg_b32 s60, hwreg(HW_REG_XCC_ID)\ns_getreg_b32 s61, hwreg(HW_REG_HW_ID)\n;')
    stamp(k, 1, idx, vt=ST_V, ins='s_memtime')
SLP = int(os.environ.get('SLP', '6')); SLP0 = int(os.environ.get('SLP0', '0'))
def get_tag(k, lab):
    k('v_mov_b32 v176, s35\ns_mov_b32 s42, 0\n%s:\nglobal_load_dwordx2 v[178:179], v176, s[6:7] sc1\ns_waitcnt vmcnt(0)', lab)
    k('v_readfirstlane_b32 s40, v178\nv_readfirstlane_b32 s41, v179\ns_add_u32 s42, s42, 1\ns_cmp_gt_u32 s42, 0x40000\ns_cbranch_scc1 %s_D', lab)
    k('s_cmp_lg_u32 s40, 0\ns_cbranch_scc1 %s_D\ns_sleep 16\ns_branch %s\n%s_D:\nv_or_b32 v178, 1, v178', lab, lab, lab)
def tag_publish(k, lab):
    get_tag(k, lab)
    k('v_mov_b32 v176, %d\nds_write_b64 v176, v[178:179]', CNT + 16)
def tag_lds(k, lab):
    k('v_mov_b32 v176, %d\n%s:\nds_read_b64 v[178:179], v176\ns_waitcnt lgkmcnt(0)\nv_readfirstlane_b32 s40, v178\nv_readfirstlane_b32 s41, v179\ns_cmp_lg_u32 s40, 0\ns_cbranch_scc1 %s_D\ns_sleep 2\ns_branch %s\n%s_D:', CNT + 16, lab, lab, lab, lab)
RL = int(os.environ.get('RL', '4'))
def signal(k, base, R=1 << RL):
    k('s_add_u32 s43, s46, 0x%x\nv_lshl_add_u32 v176, v1, 11, s43\nv_mov_b32 v178, s40\nv_mov_b32 v179, s41\ns_mov_b64 exec, 0x%x', base, (1 << R) - 1)
    k('global_store_dwordx2 v176, v[178:179], s[4:5] sc1\ns_mov_b64 exec, -1')
def poll(k, lab, base_v, nld, nl, slp0=0):
    k('s_mov_b32 s42, 0\ns_mov_b64 exec, %s', '-1' if nl == 64 else hex((1 << nl) - 1))
    if slp0: k('s_sleep %d', slp0)
    k('%s:\ns_sleep %d', lab, SLP + 2 if nl == 64 else 3)
    for i in range(nld): k('global_load_dwordx4 %s, v%d, s[4:5] offset:%d sc1', vr(176 + 4 * i, 4), base_v, 1024 * i)
    k('s_waitcnt vmcnt(0)')
    for i in range(nld):
        for j in range(4): k('v_xor_b32 v%d, s%d, v%d', 176 + 4 * i + j, 40 + (j & 1), 176 + 4 * i + j)
    for i in range(1, 4 * nld): k('v_or_b32 v176, v176, v%d', 176 + i)
    k('v_cmp_ne_u32 vcc, 0, v176\ns_add_u32 s42, s42, 1\ns_cmp_gt_u32 s42, 0x40000\ns_cbranch_scc1 %s_D', lab)
    k('s_nop 2\ns_cbranch_vccnz %s\n%s_D:\ns_mov_b64 exec, -1', lab, lab)
def roles(k):
    k('s_cmp_lt_u32 s3, 4\ns_cbranch_scc1 R_END\ns_and_b32 s26, s2, 3\nv_mov_b32 v2, s26\ns_lshr_b32 s31, s2, 2')
    k('s_cmp_eq_u32 s3, 7\ns_cbranch_scc1 R_W2\ns_cmp_eq_u32 s3, 5\ns_cbranch_scc1 R_S\ns_cmp_eq_u32 s3, 6\ns_cbranch_scc1 R_MOD')
    k('s_mov_b64 s[24:25], s[64:65]')
    k('v_and_b32 v7, 3, v1\nv_lshrrev_b32 v8, 2, v1\nv_lshl_add_u32 v8, v2, 4, v8\ns_lshl_b32 s26, s31, 5\nv_lshl_add_u32 v3, v7, 3, s26')
    k('v_lshlrev_b32 v4, 10, v3\nv_lshl_add_u32 v4, v8, 4, v4\nv_add_u32 v5, 0x1000, v4')
    for i in range(8): k('global_load_dwordx4 %s, v%d, s[24:25] offset:%d', vr(16 + 4 * i, 4), 4 if i < 4 else 5, (i & 3) * 1024)
    k('v_lshlrev_b32 v6, 15, v8\nv_lshl_add_u32 v6, v3, 1, v6\ns_waitcnt vmcnt(0)')
    transpose8(k, 16, 48, 20, 21)
    for j in range(8): k('s_mov_b32 s26, %d\nbuffer_store_dwordx4 %s, v6, s[36:39], s26 offen sc1', XT + j * 4096, vr(48 + 4 * j, 4))
    k('s_branch R_SIG')
    k('R_S:')
    k('s_mov_b64 s[24:25], s[64:65]')
    k('s_lshl_b32 s26, s31, 5\nv_lshl_add_u32 v3, v2, 3, s26\nv_lshlrev_b32 v4, 10, v3\nv_lshl_add_u32 v4, v1, 4, v4\nv_add_u32 v5, 0x1000, v4')
    for i in range(8): k('global_load_dwordx4 %s, v%d, s[24:25] offset:%d', vr(16 + 4 * i, 4), 4 if i < 4 else 5, (i & 3) * 1024)
    for i in range(16): k('v_mov_b32 v%d, 0', 80 + i)
    for i in range(8):
        k('s_waitcnt vmcnt(%d)', 7 - i)
        for a in range(4):
            k('v_dot2_f32_bf16 v%d, v%d, s22, v%d', 80 + i, 16 + 4 * i + a, 80 + i)
            k('v_dot2_f32_bf16 v%d, v%d, v%d, v%d', 88 + i, 16 + 4 * i + a, 16 + 4 * i + a, 88 + i)
    for b in (80, 88):
        for i in range(4): k('v_permlane32_swap_b32 v%d, v%d', b + i, b + i + 4)
        for i in range(4): k('v_add_f32 v%d, v%d, v%d', b + i, b + i, b + i + 4)
        for i in range(2): k('v_permlane16_swap_b32 v%d, v%d', b + i, b + i + 2)
        for i in range(2): k('v_add_f32 v%d, v%d, v%d', b + i, b + i, b + i + 2)
    rowsum16(k, [80, 81, 88, 89])
    lnstats(k, 80, 88, 96, 97, 100); lnstats(k, 81, 89, 98, 99, 101)
    k('v_lshrrev_b32 v7, 4, v1\nv_lshl_add_u32 v7, v7, 1, v3\nv_lshlrev_b32 v7, 3, v7\ns_mov_b32 s26, 0x%x', STATS)
    k('v_and_b32 v8, 15, v1\nv_cmp_eq_u32 vcc, 0, v8\ns_and_saveexec_b64 s[44:45], vcc')
    k('buffer_store_dwordx4 v[96:99], v7, s[36:39], s26 offen sc1\ns_mov_b64 exec, s[44:45]\ns_branch R_SIG')
    k('R_MOD:\ns_cmp_ge_u32 s2, 192\ns_cbranch_scc1 R_SIG')
    k('s_mov_b64 s[24:25], s[58:59]\ns_mov_b64 s[26:27], s[70:71]')
    k('s_and_b32 s28, s2, 7\ns_mul_i32 s28, s28, 24\ns_lshr_b32 s29, s2, 3\ns_add_u32 s28, s28, s29')
    k('v_lshrrev_b32 v3, 1, v1\nv_and_b32 v4, 1, v1\nv_lshlrev_b32 v5, 4, v1')
    k('global_load_dwordx4 v[8:11], v5, s[26:27]')
    k('v_mul_u32_u24 v5, 6144, v3\nv_lshl_add_u32 v5, v4, 4, v5\ns_lshl_b32 s29, s28, 5\nv_add_u32 v5, s29, v5')
    k('v_lshlrev_b32 v6, 5, v1\nv_add_u32 v6, 155648, v6\nv_lshlrev_b32 v7, 2, v3\nv_add_u32 v7, 155648, v7')
    k('s_waitcnt vmcnt(0)')
    for i in range(4): unpack(k, 16 + 2 * i, 8 + i)
    for i in range(8):
        k('v_mul_f32 v100, 0xbfb8aa3b, v%d\nv_exp_f32 v100, v100\nv_add_f32 v100, 1.0, v100\nv_rcp_f32 v100, v100\nv_mul_f32 v%d, v%d, v100', 16 + i, 16 + i, 16 + i)
        bfround(k, 16 + i, 16 + i)
    k('ds_write_b128 v6, v[16:19]\nds_write_b128 v6, v[20:23] offset:16\ns_waitcnt lgkmcnt(0)')
    for i in range(16): k('global_load_dwordx4 %s, v5, s[24:25]\nv_add_u32 v5, 0x30000, v5', vr(32 + 4 * i, 4))
    for i in range(16):
        k('ds_read_b32 v%d, v7 offset:%d', 16 + i, 128 * i)
        if i == 7: k('s_waitcnt lgkmcnt(0)')
    k('s_waitcnt lgkmcnt(0)')
    for j in range(8): k('v_mov_b32 v%d, 0', 104 + j)
    for i in range(16):
        k('s_waitcnt vmcnt(%d)', 15 - i)
        for a in range(4):
            unpack(k, 100, 32 + 4 * i + a)
            k('v_pk_fma_f32 %s, v[100:101], %s, %s op_sel:[0,%d,0] op_sel_hi:[1,%d,1]', vr(104 + 2 * a, 2), vr(16 + (i & ~1), 2), vr(104 + 2 * a, 2), i & 1, i & 1)
    for i in range(4): k('v_permlane32_swap_b32 v%d, v%d', 104 + i, 108 + i)
    for i in range(4): k('v_add_f32 v%d, v%d, v%d', 104 + i, 104 + i, 108 + i)
    for i in range(2): k('v_permlane16_swap_b32 v%d, v%d', 104 + i, 106 + i)
    for i in range(2): k('v_add_f32 v%d, v%d, v%d', 104 + i, 104 + i, 106 + i)
    for mode in ('row_ror:8', 'row_ror:4', 'row_ror:2'):
        for i in range(2): k('v_add_f32_dpp v%d, v%d, v%d %s row_mask:0xf bank_mask:0xf', 104 + i, 104 + i, 104 + i, mode)
    bfround(k, 104, 104); bfround(k, 105, 105)
    k('v_lshrrev_b32 v6, 4, v1\nv_lshlrev_b32 v6, 3, v6\nv_lshl_add_u32 v6, v4, 5, v6\ns_lshl_b32 s29, s28, 6\ns_add_u32 s29, s29, 0x%x', MOD)
    k('v_and_b32 v8, 14, v1\nv_cmp_eq_u32 vcc, 0, v8\ns_and_saveexec_b64 s[44:45], vcc')
    k('buffer_store_dwordx2 v[104:105], v6, s[36:39], s29 offen sc1\ns_mov_b64 exec, s[44:45]')
    k('R_SIG:')
    k('s_waitcnt vmcnt(0)')
    k('v_mov_b32 v8, %d\nv_mov_b32 v9, 1\ns_mov_b64 s[44:45], exec\ns_mov_b64 exec, 1\nds_add_rtn_u32 v9, v8, v9\ns_waitcnt lgkmcnt(0)\ns_mov_b64 exec, s[44:45]', CNT)
    k('v_readfirstlane_b32 s26, v9\ns_cmp_lg_u32 s26, 2\ns_cbranch_scc1 R_END')
    tag_lds(k, 'R_TAG'); signal(k, FLG1)
    k('s_branch R_END')
    k('R_W2:\ns_mov_b32 s40, 0\ns_cmp_ge_u32 s2, 224\ns_cbranch_scc1 R_W2T')
    k('s_mov_b64 s[24:25], s[68:69]')
    k('s_mov_b32 s28, s31\ns_mul_i32 s29, s28, 0x5556\ns_lshr_b32 s29, s29, 16\ns_lshl_b32 s30, s28, 1\ns_add_u32 s29, s29, s30\ns_mov_b32 s30, 1')
    k('s_cmp_lt_u32 s28, 48\ns_cbranch_scc1 R_W2a\ns_sub_u32 s29, s28, 48\ns_mul_i32 s29, s29, 14\ns_add_u32 s29, s29, 6\ns_mov_b32 s30, 7\nR_W2a:')
    k('s_lshl_b32 s29, s29, 14\ns_lshl_b32 s30, s30, 14')
    k('v_and_b32 v4, 1, v2\nv_lshlrev_b32 v4, 13, v4\nv_lshrrev_b32 v5, 1, v2\nv_lshl_add_u32 v4, v5, 10, v4\nv_lshl_add_u32 v4, v1, 4, v4\nv_add_u32 v4, s29, v4')
    k('v_add_u32 v5, 0x1000, v4\nv_add_u32 v6, s30, v4\nv_add_u32 v7, s30, v5')
    for i in range(8): k('global_load_dwordx4 %s, v%d, s[24:25] offset:%d', vr(16 + 4 * i, 4), 4 + (i >> 1), (i & 1) * 2048)
    k('v_mov_b32 v8, 0\nv_lshrrev_b32 v9, 5, v1\nv_mul_u32_u24 v9, 4160, v9\nv_add_u32 v9, v9, v8')
    k('v_bfe_u32 v10, v1, 3, 2\nv_lshl_add_u32 v9, v10, 10, v9\nv_and_b32 v10, 1, v1\nv_lshl_add_u32 v9, v10, 9, v9\nv_bfe_u32 v10, v1, 1, 2\nv_lshl_add_u32 v9, v10, 6, v9')
    k('v_lshl_add_u32 v8, v1, 4, v8')
    k('v_lshrrev_b32 v6, 4, v1\nv_lshlrev_b32 v6, 10, v6\nv_and_b32 v7, 15, v1\nv_lshl_add_u32 v6, v7, 4, v6\nv_lshl_add_u32 v6, v2, 8, v6')
    k('s_lshl_b32 s29, s28, 12\ns_add_u32 s29, s29, 0x%x\ns_waitcnt vmcnt(0)', W2F)
    k('v_mov_b32 v176, s35\nglobal_load_dwordx2 v[178:179], v176, s[6:7] sc1')
    transpose8(k, 16, 48, 20, 21)
    for j in range(8): k('ds_write_b128 v9, %s offset:%d', vr(48 + 4 * j, 4), (j >> 2) * 256 + (j & 3) * 16)
    k('s_waitcnt lgkmcnt(0)')
    k('s_waitcnt vmcnt(0)\nv_readfirstlane_b32 s40, v178\nv_mov_b32 v176, %d\nds_write_b64 v176, v[178:179]', CNT + 16)
    for j in range(8): k('ds_read_b128 %s, v8 offset:%d', vr(16 + 4 * j, 4), (j >> 2) * 4160 + (j & 3) * 1024)
    for j in range(8): k('s_waitcnt lgkmcnt(%d)\nbuffer_store_dwordx4 %s, v6, s[36:39], s29 offen sc1\ns_add_u32 s29, s29, %d', 7 - j, vr(16 + 4 * j, 4), 56 * 4096)
    k('R_W2T:\ns_cmp_lg_u32 s40, 0\ns_cbranch_scc1 R_END')
    k('s_waitcnt vmcnt(0)')
    tag_publish(k, 'R_TG')
    k('R_END:')

def lsync(k, idx, target, lab):
    k('s_waitcnt lgkmcnt(0)\nv_mov_b32 v180, %d\nv_mov_b32 v181, 1\ns_mov_b64 exec, 1\nds_add_u32 v180, v181\ns_mov_b64 exec, -1\n%s:', CNT + 4 * idx, lab)
    k('s_sleep 1\nds_read_b32 v181, v180\ns_waitcnt lgkmcnt(0)\nv_readfirstlane_b32 s43, v181\ns_cmp_lt_u32 s43, %d\ns_cbranch_scc1 %s', target, lab)
```
